```python
import torch

def _softmax(x, axis=-1):
    return torch.softmax(x, dim=axis)
def _gelu(x):
    return torch.nn.functional.gelu(x, approximate="tanh")
def _silu(x):
    return torch.nn.functional.silu(x)
def _sigmoid(x):
    return torch.sigmoid(x)
def _layernorm(x, axis=-1, eps=1e-5):
    m = x.mean(dim=axis, keepdim=True)
    v = x.var(dim=axis, keepdim=True, unbiased=False)
    return (x - m) / torch.sqrt(v + eps)
def _scatter_add(tgt, idx, src, axis=0):
    return tgt.clone().index_add_(axis, idx, src)
def _segment_sum(src, seg, n):
    out = torch.zeros((n,) + src.shape[1:], dtype=src.dtype)
    return out.index_add_(0, seg, src)
def _pad(x, pw):
    flat = tuple(v for pair in reversed(pw) for v in pair)
    return torch.nn.functional.pad(x, flat)

kernel_name = 'sequential_preLN__ssm_conv_s4d__dense_activation_silu__prompt'

def setup_inputs():

    _w = (lambda a: (lambda t: t.to(torch.bfloat16) if t.is_floating_point() else t)(torch.as_tensor(a)))
    def _A_setup():
        Bsz, L, D, N = 1, 2048, 512, 128
        return {
            "u": _w((lambda *s: torch.randn(*s, dtype=torch.bfloat16) * 0.05)(Bsz, L, D)),
            "log_A_real": _w((lambda *s: torch.randn(*s, dtype=torch.bfloat16) * 6.4)(D, N) * 0.5),
            "A_imag": _w((lambda *s: torch.randn(*s, dtype=torch.bfloat16) * 0.05)(D, N) * 3.14),
            "C_real": _w((lambda *s: torch.randn(*s, dtype=torch.bfloat16) * 0.05)(D, N) / N ** 0.5),
            "C_imag": _w((lambda *s: torch.randn(*s, dtype=torch.bfloat16) * 0.05)(D, N) / N ** 0.5),
            "log_dt": _w((lambda *s: torch.randn(*s, dtype=torch.bfloat16) * 0.05)(D) * 0.5 - 4.0),
            "D_skip": _w((lambda *s: torch.randn(*s, dtype=torch.bfloat16) * 0.05)(D)),
        }
    _A_in = _A_setup()

    def _B_setup():
        B, S, D, F = 1, 2048, 512, 1376
        return {
            "x": _w((lambda *s: torch.randn(*s, dtype=torch.bfloat16) * 0.05)(B, S, D)),
            "w1": _w((lambda *s: torch.randn(*s, dtype=torch.bfloat16) * 0.8)(D, F) * (D ** -0.5)),
            "w2": _w((lambda *s: torch.randn(*s, dtype=torch.bfloat16) * 0.2)(F, D) * (F ** -0.5)),
        }
    _B_in = _B_setup()

    return {
        "A_u": _A_in["u"],
        "A_log_A_real": _A_in["log_A_real"],
        "A_A_imag": _A_in["A_imag"],
        "A_C_real": _A_in["C_real"],
        "A_C_imag": _A_in["C_imag"],
        "A_log_dt": _A_in["log_dt"],
        "A_D_skip": _A_in["D_skip"],
        "B_x": _B_in["x"],
        "B_w1": _B_in["w1"],
        "B_w2": _B_in["w2"],
    }

def reference(A_u, A_log_A_real, A_A_imag, A_C_real, A_C_imag, A_log_dt, A_D_skip, B_x, B_w1, B_w2):
    def _A_ref(u, log_A_real, A_imag, C_real, C_imag, log_dt, D_skip):
        L = u.shape[1]
        dt = torch.exp(log_dt)
        A = -torch.exp(log_A_real) + 1j * A_imag
        C = (C_real + 1j * C_imag) * dt[:, None]
        pos = (lambda x, dt: x.to(dt))(torch.arange(L), log_dt.dtype)
        P = torch.exp((A * dt[:, None])[:, :, None] * pos[None, None, :])
        K = 2.0 * torch.einsum("dn,dnl->dl", C, P).real
        L2 = 2 * L
        u_t = (lambda x, *d: x.permute(*d))(u, 0, 2, 1)
        Kf = (lambda x, *a, **k: torch.fft.rfft(x.float(), *a, **k))(K, L2)
        Uf = (lambda x, *a, **k: torch.fft.rfft(x.float(), *a, **k))(u_t, L2)
        y = (lambda x, *a, **k: torch.fft.irfft(x, *a, **k).to(torch.bfloat16))(Uf * Kf[None, :, :], L2)[:, :, :L]
        y = (lambda x, *d: x.permute(*d))(y, 0, 2, 1)
        return y + u * D_skip[None, None, :]

    def _B_ref(x, w1, w2):
        h = torch.einsum("bsd,df->bsf", x, w1)
        h = _silu(h)
        out = torch.einsum("bsf,fd->bsd", h, w2)
        return out

    x = A_u
    h = x + _A_ref(_layernorm(x, axis=-1), A_log_A_real, A_A_imag, A_C_real, A_C_imag, A_log_dt, A_D_skip)
    h2 = h + _B_ref(_layernorm(h, axis=-1), B_w1, B_w2)
    return h2
```

```python
import re, itertools

REG = re.compile(r'^(-?)(abs\()?([vas])(\d+|\[(\d+):(\d+)\])\)?$')
TRANS = ('v_exp_f32', 'v_log_f32', 'v_rcp_f32', 'v_rsq_f32', 'v_sqrt_f32', 'v_sin_f32', 'v_cos_f32', 'v_rcp_iflag_f32')


def regs_of(op):
    op = op.strip()
    if op == 'vcc':
        return {('s', 'vcc')}
    if op in ('vcc_lo', 'vcc_hi'):
        return {('s', 'vcc')}
    if op in ('exec', 'exec_lo', 'exec_hi'):
        return {('s', 'exec')}
    if op == 'm0':
        return {('s', 'm0')}
    m = REG.match(op)
    if not m:
        return set()
    f = m.group(3)
    if m.group(5) is not None:
        return {(f, i) for i in range(int(m.group(5)), int(m.group(6)) + 1)}
    return {(f, int(m.group(4)))}


def split_ops(s):
    out, depth, cur = [], 0, ''
    for ch in s:
        if ch in '[(':
            depth += 1
        if ch in '])':
            depth -= 1
        if ch == ',' and depth == 0:
            out.append(cur.strip())
            cur = ''
        else:
            cur += ch
    if cur.strip():
        out.append(cur.strip())
    return out


class Ins:
    def __init__(self, text, tag=None):
        self.text = text
        self.tag = tag
        t = text.split(';')[0].strip()
        self.label = None
        self.kind = 'other'
        self.defs, self.uses = set(), set()
        self.srcA = self.srcB = self.srcC = set()
        self.passes = 0
        self.target = None
        self.dpp = False
        self.nop = 0
        if not t:
            self.kind = 'comment'
            return
        if t.endswith(':'):
            self.kind = 'label'
            self.label = t[:-1]
            return
        if t.startswith('.'):
            self.kind = 'directive'
            return
        parts = t.split(None, 1)
        mn = parts[0]
        for suf in ('_e32', '_e64', '_dpp', '_sdwa'):
            if mn.endswith(suf):
                mn = mn[:-len(suf)]
        self.mn = mn
        rest = parts[1] if len(parts) > 1 else ''
        ops = split_ops(rest)
        mods = ''
        if ops:
            last = ops[-1].split(None, 1)
            ops[-1] = last[0]
            mods = last[1] if len(last) > 1 else ''
        self.ops, self.mods = ops, mods
        R = [regs_of(o) for o in ops]
        U = lambda xs: set().union(*xs) if xs else set()
        if mn == 's_nop':
            self.kind = 'nop'
            self.nop = int(ops[0], 0) + 1
        elif mn == 's_waitcnt':
            self.kind = 'wait'
            self.vm = self.lgkm = None
            m = re.search(r'vmcnt\((\d+)\)', rest)
            if m:
                self.vm = int(m.group(1))
            m = re.search(r'lgkmcnt\((\d+)\)', rest)
            if m:
                self.lgkm = int(m.group(1))
        elif mn == 's_barrier':
            self.kind = 'barrier'
        elif mn == 's_endpgm':
            self.kind = 'end'
        elif mn.startswith('s_cbranch') or mn == 's_branch':
            self.kind = 'branch'
            self.target = ops[0]
            if 'vcc' in mn:
                self.uses = {('s', 'vcc')}
            if 'exec' in mn:
                self.uses = {('s', 'exec')}
        elif mn.startswith('s_load') or mn in ('s_memtime', 's_memrealtime'):
            self.kind = 'smem'
            self.defs = R[0]
            self.uses = U(R[1:])
        elif mn.startswith('s_cmp') or mn.startswith('s_bitcmp') or mn in ('s_setprio', 's_sleep'):
            self.kind = 'salu'
            self.uses = U(R)
        elif mn.startswith('s_'):
            self.kind = 'salu'
            self.defs = set(R[0])
            self.uses = U(R[1:])
            if 'saveexec' in mn:
                self.defs |= {('s', 'exec')}
                self.uses |= {('s', 'exec')}
            if mn in ('s_addk_i32', 's_mulk_i32', 's_bitset1_b32', 's_bitset0_b32', 's_cmov_b32'):
                self.uses |= R[0]
        elif mn.startswith('v_mfma'):
            self.kind = 'mfma'
            self.defs = R[0]
            self.srcA, self.srcB, self.srcC = R[1], R[2], R[3]
            self.uses = R[1] | R[2] | R[3]
            self.passes = 8 if '32x32' in mn else 4
        elif mn.startswith('v_'):
            self.kind = 'valu'
            self.dpp = any(k in mods for k in ('quad_perm', 'row_', 'wave_'))
            self.defs = set(R[0])
            self.uses = U(R[1:])
            if mn.startswith('v_permlane') or mn == 'v_swap_b32':
                self.defs = R[0] | R[1]
                self.uses = R[0] | R[1]
            if mn in ('v_add_co_u32', 'v_sub_co_u32', 'v_addc_co_u32', 'v_subb_co_u32', 'v_mad_u64_u32'):
                self.defs = R[0] | R[1]
                self.uses = U(R[2:])
            if mn in ('v_fmac_f32', 'v_dot2c_f32_bf16', 'v_writelane_b32', 'v_pk_fmac_f16') or self.dpp:
                self.uses |= R[0]
            if mn == 'v_cndmask_b32' and len(ops) == 3:
                self.uses |= {('s', 'vcc')}
            if mn.startswith('v_cmpx'):
                self.defs |= {('s', 'exec')}
        elif mn.startswith('ds_'):
            self.kind = 'ds'
            if mn.startswith('ds_read') or mn in ('ds_swizzle_b32', 'ds_bpermute_b32', 'ds_permute_b32') or '_rtn' in mn:
                self.defs = R[0]
                self.uses = U(R[1:])
                self.isload = True
            else:
                self.uses = U(R)
                self.isload = False
            if 'addtid' in mn:
                self.uses = self.uses | {('s', 'm0')}
        elif mn.startswith('buffer_') or mn.startswith('global_'):
            self.kind = 'vmem'
            self.ldsdma = (' lds' in ' ' + mods) or '_lds_' in mn
            self.wide = mn.endswith('x4') or mn.endswith('x3')
            self.data = set()
            if 'load' in mn:
                self.isload = True
                if self.ldsdma:
                    self.uses = U(R) | {('s', 'm0')}
                else:
                    self.defs = R[0]
                    self.uses = U(R[1:])
            elif 'atomic' in mn:
                ret = 'sc0' in mods
                self.isload = ret
                if mn.startswith('buffer_'):
                    self.uses = U(R)
                    if ret:
                        self.defs = R[0]
                else:
                    if ret:
                        self.defs = R[0]
                        self.uses = U(R[1:])
                    else:
                        self.uses = U(R)
            else:
                self.isload = False
                self.uses = U(R)
                self.data = R[0] if mn.startswith('buffer_') else R[1]
        else:
            raise ValueError('unknown instruction: ' + text)

    def states(self):
        if self.kind in ('label', 'comment', 'directive'):
            return 0
        if self.kind == 'nop':
            return self.nop
        return 1


def vec(rs):
    return {r for r in rs if r[0] in 'va'}


def sca(rs):
    return {r for r in rs if r[0] == 's'}


def need(p, c):
    n = 0
    pk, ck = p.kind, c.kind
    if pk == 'valu':
        sd, vd = sca(p.defs), vec(p.defs)
        isdot = p.mn.startswith('v_dot')
        if ck == 'vmem' and sd & c.uses:
            n = max(n, 5)
        if ck == 'valu' and sd & c.uses:
            n = max(n, 4 if c.mn in ('v_readlane_b32', 'v_writelane_b32') else 2)
        if ck == 'valu' and vd & c.uses:
            if c.dpp or c.mn.startswith('v_permlane'):
                n = max(n, 2)
            if c.mn in ('v_readlane_b32', 'v_readfirstlane_b32'):
                n = max(n, 1)
            if p.mn in TRANS:
                n = max(n, 1)
        if ck == 'mfma' and vd & c.uses:
            n = max(n, 2)
        if isdot:
            if ck == 'valu' and c.mn == p.mn:
                ab = set().union(*[regs_of(o) for o in c.ops[1:3]])
                if vd & ab:
                    n = max(n, 3)
            elif vd & (c.uses | c.defs):
                n = max(n, 3)
        if ('s', 'exec') in p.defs:
            if ck == 'mfma':
                n = max(n, 4)
            if ck == 'valu':
                n = max(n, 5)
        if 'op_sel' in p.mods and not p.mn.startswith('v_pk_') and ck == 'valu' and vd & (c.uses | c.defs):
            n = max(n, 1)
    if pk == 'mfma':
        big = {4: 8, 8: 12}[p.passes]
        ovl = {4: 6, 8: 10}[p.passes]
        war = {4: 3, 8: 7}[p.passes]
        if ck == 'mfma':
            if p.defs & (c.srcA | c.srcB):
                n = max(n, big)
            if p.defs & c.srcC and not (p.defs == c.srcC and p.passes == c.passes):
                n = max(n, ovl)
            if p.defs & c.defs and not (p.defs == c.srcC and p.passes == c.passes):
                n = max(n, ovl)
        elif ck in ('valu', 'ds', 'vmem'):
            if p.defs & (c.uses | c.defs):
                n = max(n, big)
            if ck == 'valu' and p.srcC & c.defs:
                n = max(n, war)
    if pk == 'vmem' and not p.isload and p.wide and p.data & c.defs:
        n = max(n, 2)
    if pk == 'salu' and ('s', 'm0') in p.defs and ck in ('ds', 'vmem') and ('s', 'm0') in c.uses:
        n = max(n, 1)
    return n


class Asm:
    def __init__(self):
        self.ins = []

    def __call__(self, text, tag=None):
        for line in text.split('\n'):
            if line.strip():
                self.ins.append(Ins('    ' + line.strip() if not line.strip().endswith(':') else line.strip(), tag))

    def label(self, name):
        self.ins.append(Ins(name + ':'))

    def preds(self):
        lab = {x.label: i for i, x in enumerate(self.ins) if x.kind == 'label'}
        pr = [[] for _ in self.ins]
        for i, x in enumerate(self.ins):
            if i + 1 < len(self.ins) and not (x.kind == 'end' or (x.kind == 'branch' and x.mn == 's_branch')):
                pr[i + 1].append(i)
            if x.kind == 'branch':
                pr[lab[x.target]].append(i)
        return pr

    def fix_hazards(self):
        inserted = 0
        while True:
            pr = self.preds()
            todo = None
            for i, c in enumerate(self.ins):
                if c.kind in ('label', 'comment', 'directive', 'nop', 'wait', 'barrier', 'end'):
                    continue
                worst = 0
                stack = [(p, 0) for p in pr[i]]
                seen = {}
                while stack:
                    k, d = stack.pop()
                    if d >= 12 or seen.get(k, 99) <= d:
                        continue
                    seen[k] = d
                    p = self.ins[k]
                    if p.kind in ('valu', 'mfma', 'vmem', 'salu'):
                        worst = max(worst, need(p, c) - d)
                    for q in pr[k]:
                        stack.append((q, d + p.states()))
                if worst > 0:
                    todo = (i, worst)
                    self.ins.insert(i, Ins('    s_nop %d' % (worst - 1)))
                    inserted += worst
                    break
            if todo is None:
                return inserted

    def fix_hazards_fast(self):
        total = 0
        while True:
            pr = self.preds()
            add = {}
            for i, c in enumerate(self.ins):
                if c.kind in ('label', 'comment', 'directive', 'nop', 'wait', 'barrier', 'end'):
                    continue
                worst = 0
                stack = [(p, 0) for p in pr[i]]
                seen = {}
                while stack:
                    k, d = stack.pop()
                    if d >= 12 or seen.get(k, 99) <= d:
                        continue
                    seen[k] = d
                    p = self.ins[k]
                    if p.kind in ('valu', 'mfma', 'vmem', 'salu'):
                        worst = max(worst, need(p, c) - d)
                    for q in pr[k]:
                        stack.append((q, d + p.states() + add.get(k, 0)))
                if worst > 0:
                    add[i] = worst
            if not add:
                return total
            new = []
            for i, x in enumerate(self.ins):
                if i in add:
                    new.append(Ins('    s_nop %d' % (add[i] - 1)))
                    total += add[i]
                new.append(x)
            self.ins = new

    def check_waits(self):
        lab = {x.label: i for i, x in enumerate(self.ins) if x.kind == 'label'}
        tags = sorted({x.tag[0] for x in self.ins if x.kind == 'branch' and x.tag})
        errs = set()
        for combo in itertools.product([0, 1], repeat=len(tags)):
            env = dict(zip(tags, combo))
            if not self.consistent(env):
                continue
            vm, lg = [], []
            taken_back = {}
            i = 0
            while i < len(self.ins):
                x = self.ins[i]
                if x.kind == 'end':
                    break
                if x.kind == 'branch':
                    t = lab[x.target]
                    if t <= i:
                        if taken_back.get(i, 0) < 1:
                            taken_back[i] = taken_back.get(i, 0) + 1
                            i = t
                            continue
                        if x.mn == 's_branch':
                            errs.add((i, 'unconditional back edge'))
                            break
                    elif x.mn == 's_branch':
                        i = t
                        continue
                    elif x.tag:
                        if env[x.tag[0]] == x.tag[1]:
                            i = t
                            continue
                    i += 1
                    continue
                if x.kind == 'wait':
                    if x.vm is not None:
                        while len(vm) > x.vm:
                            vm.pop(0)
                    if x.lgkm is not None:
                        if x.lgkm == 0:
                            lg = []
                        elif any(o.kind == 'smem' for o in lg):
                            errs.add((i, 'counted lgkmcnt with SMEM outstanding'))
                        else:
                            while len(lg) > x.lgkm:
                                lg.pop(0)
                    i += 1
                    continue
                if x.kind == 'barrier':
                    if any(o.kind == 'ds' and not o.isload for o in lg):
                        errs.add((i, 'barrier with ds_write outstanding'))
                touched = x.uses | x.defs
                for o in vm + lg:
                    if o.defs & touched:
                        errs.add((i, 'touches pending %s' % o.text.strip()))
                if x.kind == 'vmem':
                    vm.append(x)
                    if len(vm) > 63:
                        errs.add((i, 'more than 63 vmem outstanding'))
                elif x.kind in ('ds', 'smem'):
                    lg.append(x)
                i += 1
        for i, e in sorted(errs):
            print('WAIT-CHECK line %d: %s   <<%s>>' % (i, e, self.ins[i].text.strip()))
        return len(errs)

    def consistent(self, env):
        return True

    def text(self):
        return '\n'.join(x.text for x in self.ins) + '\n'

    def stats(self):
        from collections import Counter
        return Counter(x.kind for x in self.ins)
```

```python
import sys, os
sys.path.insert(0, os.path.dirname(os.path.abspath(__file__)))
from asmlib import Asm

NAME = "sequential_preLN__ssm_conv_s4d__dense_activation_silu__prompt"
OPT = dict(stamps=0, dump=0, spin=20000)
for a_ in sys.argv[2:]:
    k_, v_ = a_.split('=')
    OPT[k_] = int(v_, 0)

WS_EPOCH = 0
WS_STATS = 0x1000
WS_FLAGB = 0x9000
WS_FLAGC = 0x11000
WS_STAMP = 0x20000
WS_W1F = 0x100000
WS_W2F = 0x280000
WS_HT = 0x400000
WS_HF = 0x600000
WS_DUMP = 0xC00000
WS_SIZE = 0x1000000
TAGC = 0x9E3779B9

PITCH = 528
TAB_CH = 59 * PITCH
L_U = 0
U_CH = 4608
L_BASE = 9216
L_CX = 25600
L_RED = 0
L_TB = 49152
L_ST2 = 57344
L_KC = 62464
KC_CH = 34304
L_HL = L_KC
L_XG = 131072
LDS_SIZE = 139264
CB = [16 * (265 * c + 8 * (c >> 1)) for c in range(8)]

S_W = 's3'
SRD_X, SRD_W1, SRD_W2, SRD_OUT, SRD_WS, SRD_T = 's[32:35]', 's[36:39]', 's[40:43]', 's[44:47]', 's[48:51]', 's[60:63]'
S_CP, S_MT, S_N, S_TAG, S_E, S_LD, S_DS = 's52', 's53', 's54', 's55', 's56', 's57', 's58'
S_ONES = 's59'
S_D = 's30'
S_HALF = 's31'

a = Asm()
LOG2E = 0x3fb8aa3b
INV2PI = 0x3e22f983


def v(i, n=1):
    return 'v%d' % i if n == 1 else 'v[%d:%d]' % (i, i + n - 1)


def ac(i, n=1):
    return 'a%d' % i if n == 1 else 'a[%d:%d]' % (i, i + n - 1)


nstamp = [0]


def stamp(name=''):
    if not OPT['stamps']:
        return
    k = nstamp[0]
    nstamp[0] += 1
    assert k < 20
    a('s_memrealtime s[78:79]   ; stamp %d %s' % (k, name))
    a('s_waitcnt lgkmcnt(0)')
    a('s_mov_b32 s%d, s78' % (80 + k))


V_TID, V_L = 0, 1


def prologue():
    a('s_cmp_ge_u32 s2, 256')
    a('s_cbranch_scc1 L_end', tag=('exit', 1))
    a('s_load_dwordx16 s[4:19], s[0:1], 0')
    a('s_load_dwordx4 s[20:23], s[0:1], 64')
    a('s_load_dwordx2 s[24:25], s[0:1], 80')
    a('s_load_dwordx2 s[28:29], s[0:1], 96')
    a('v_lshrrev_b32 v2, 6, v0')
    a('v_and_b32 v1, 63, v0')
    a('v_readfirstlane_b32 s3, v2')
    a('s_and_b32 s64, s2, 7')
    a('s_lshr_b32 s65, s2, 3')
    a('s_lshl_b32 s66, s64, 5')
    a('s_add_u32 %s, s66, s65' % S_CP)
    a('s_lshl_b32 s66, s64, 2')
    a('s_lshr_b32 s67, s2, 6')
    a('s_add_u32 %s, s66, s67' % S_MT)
    a('s_and_b32 %s, s65, 7' % S_N)
    a('s_lshr_b32 s64, s3, 1')
    a('s_lshl_b32 s65, %s, 1' % S_CP)
    a('s_add_u32 %s, s65, s64' % S_D)
    a('s_and_b32 %s, s3, 1' % S_HALF)
    a('s_mov_b32 %s, 0x3f803f80' % S_ONES)
    a('v_lshrrev_b32 v2, 5, v1')
    a('v_and_b32 v3, 31, v1')
    a('v_lshlrev_b32 v3, 4, v3')
    a('v_lshl_or_b32 v2, v2, 10, v3')
    a('s_lshl_b32 s64, s2, 13')
    a('s_lshl_b32 s65, s3, 11')
    a('s_add_u32 s64, s64, s65')
    a('s_lshl_b32 s66, %s, 2' % S_CP)
    a('s_lshl_b32 s67, %s, 8' % S_D)
    a('s_lshl_b32 s68, %s, 7' % S_HALF)
    a('s_add_u32 s67, s67, s68')
    a('v_lshl_add_u32 v3, v1, 1, s67')
    a('s_mov_b32 s34, 0x200000')
    a('s_mov_b32 s35, 0x20000')
    a('s_waitcnt lgkmcnt(0)')
    a('s_mov_b32 s32, s4')
    a('s_mov_b32 s33, s5')
    a('buffer_load_dwordx4 v[16:19], v2, %s, s64 offen' % SRD_X)
    a('buffer_load_dwordx4 v[20:23], v2, %s, s64 offen offset:512' % SRD_X)
    a('s_load_dword %s, s[28:29], 0' % S_E)
    a('s_load_dword %s, s[14:15], s66' % S_LD)
    a('s_load_dword %s, s[16:17], s66' % S_DS)
    a('global_load_ushort v24, v3, s[6:7]')
    a('global_load_ushort v25, v3, s[8:9]')
    a('global_load_ushort v26, v3, s[10:11]')
    a('global_load_ushort v27, v3, s[12:13]')
    for srd, p, size in ((36, 20, 512 * 2752), (40, 22, 1376 * 1024), (44, 24, 0x200000), (48, 28, WS_SIZE)):
        a('s_mov_b32 s%d, s%d' % (srd, p))
        a('s_mov_b32 s%d, s%d' % (srd + 1, p + 1))
        a('s_mov_b32 s%d, 0x%x' % (srd + 2, size))
        a('s_mov_b32 s%d, 0x20000' % (srd + 3))
    stamp('start')


V_WL = 32


def p1_issue():
    a('s_cmp_eq_u32 s3, 3')
    a('s_cbranch_scc1 L_gather', tag=('w3', 1))
    a('s_mul_i32 s64, s2, 3')
    a('s_add_u32 s64, s64, s3')
    a('v_and_b32 v4, 15, v1')
    a('v_lshrrev_b32 v5, 4, v1')
    a('s_cmp_ge_u32 s64, 352')
    a('s_cbranch_scc1 L_task_w2', tag=('w2task', 1))
    a('s_lshr_b32 s65, s64, 4')
    a('s_and_b32 s66, s64, 15')
    a('s_mul_i32 s67, s66, %d' % (32 * 2752))
    a('s_lshl_b32 s68, s65, 7')
    a('s_add_u32 s70, s67, s68')
    a('s_mov_b32 s71, 2752')
    a('s_mov_b32 s72, %d' % (16 * 2752))
    a('v_mul_u32_u24 v5, %d, v5' % (4 * 2752))
    a('v_lshl_add_u32 v6, v4, 3, v5')
    a('s_lshl_b32 s68, s65, 6')
    a('v_lshl_add_u32 v7, v4, 2, s68')
    a('v_mov_b32 v8, 0x40000000')
    a('v_cmp_gt_u32 vcc, 1376, v7')
    a('s_lshl_b32 s67, s65, 16')
    a('s_lshl_b32 s68, s66, 10')
    a('v_cndmask_b32 v6, v8, v6, vcc')
    a('s_add_u32 s73, s67, s68')
    a('s_add_u32 s73, s73, 0x%x' % WS_W1F)
    a('s_mov_b32 s74, 16384')
    for k in range(4):
        a('s_mov_b32 s%d, s%d' % (60 + k, 36 + k))
    a('s_branch L_task_go')
    a.label('L_task_w2')
    a('s_sub_u32 s64, s64, 352')
    a('s_lshr_b32 s65, s64, 3')
    a('s_and_b32 s66, s64, 7')
    a('s_mul_i32 s67, s65, 43')
    a('s_lshr_b32 s67, s67, 8')
    a('s_mul_i32 s68, s67, 6')
    a('s_sub_u32 s68, s65, s68')
    a('s_lshl_b32 s69, s67, 6')
    a('s_lshl_b32 s70, s68, 1')
    a('s_add_u32 s70, s69, s70')
    a('s_lshl_b32 s69, s67, 7')
    a('s_add_u32 s69, s69, s68')
    a('s_add_u32 s69, s69, 510')
    a('s_cmp_lt_u32 s68, 2')
    a('s_cselect_b32 s70, s70, s69')
    a('s_cselect_b32 s72, 0, 6')
    a('s_lshl_b32 s72, 1024, s72')
    a('s_lshl_b32 s70, s70, 10')
    a('s_lshl_b32 s69, s66, 7')
    a('s_add_u32 s70, s70, s69')
    a('s_mov_b32 s71, 4096')
    a('v_lshlrev_b32 v5, 14, v5')
    a('v_lshl_add_u32 v6, v4, 3, v5')
    a('s_mul_i32 s73, s66, 44')
    a('s_add_u32 s73, s73, s65')
    a('s_lshl_b32 s73, s73, 12')
    a('s_add_u32 s73, s73, 0x%x' % WS_W2F)
    a('s_cmp_lt_u32 s65, 44')
    a('s_cselect_b32 s73, s73, 0x40000000')
    a('s_mov_b32 s74, 1024')
    for k in range(4):
        a('s_mov_b32 s%d, s%d' % (60 + k, 40 + k))
    a.label('L_task_go')
    a('s_add_u32 s75, s70, s72')
    for e in range(4):
        a('buffer_load_dwordx2 %s, v6, %s, s70 offen' % (v(V_WL + 2 * e, 2), SRD_T))
        a('buffer_load_dwordx2 %s, v6, %s, s75 offen' % (v(V_WL + 8 + 2 * e, 2), SRD_T))
        if e < 3:
            a('s_add_u32 s70, s70, s71')
            a('s_add_u32 s75, s75, s71')
    a('s_waitcnt vmcnt(12)')
    a('s_branch L_stats')
    a.label('L_gather')
    a('v_lshlrev_b32 v6, 10, v1')
    a('s_lshl_b32 s64, %s, 2' % S_CP)
    for q in range(32):
        if q % 16 == 0:
            a('s_mov_b32 m0, %d' % (L_XG + 256 * q))
        a('buffer_load_dword v6, %s, s64 offen offset:%d lds' % (SRD_X, 256 * (q % 16)))
        if q < 31:
            a('s_add_u32 s64, s64, %d' % (65536 - 256 if q % 16 != 15 else 65536 + 15 * 256))
    a('s_waitcnt vmcnt(36)')
    a.label('L_stats')


def rowsum_dpp(regs):
    for m in ('quad_perm:[1,0,3,2]', 'quad_perm:[2,3,0,1]', 'row_half_mirror', 'row_mirror'):
        for r in regs:
            a('v_add_f32 %s, %s, %s %s row_mask:0xf bank_mask:0xf' % (v(r), v(r), v(r), m))


def p1_stats():
    stamp('x landed')
    a('v_mov_b32 v8, 0')
    a('v_mov_b32 v9, 0')
    for k in range(8):
        a('v_dot2c_f32_bf16 v8, %s, %s' % (S_ONES, v(16 + k)))
        a('v_dot2c_f32_bf16 v9, %s, %s' % (v(16 + k), v(16 + k)))
    rowsum_dpp([8, 9])
    a('v_mov_b32 v10, v8')
    a('v_mov_b32 v11, v9')
    a('v_permlane16_swap_b32 v8, v10')
    a('v_permlane16_swap_b32 v9, v11')
    a('v_add_f32 v8, v8, v10')
    a('v_add_f32 v9, v9, v11')
    a('v_mul_f32 v8, 0x3b000000, v8')
    a('v_mul_f32 v10, v8, v8')
    a('s_mov_b32 s64, 0x3b000000')
    a('v_fma_f32 v9, v9, s64, -v10')
    a('v_max_f32 v9, 0, v9')
    a('v_add_f32 v9, 0x3727c5ac, v9')
    a('v_rsq_f32 v12, v9')
    a('v_readlane_b32 s65, v8, 32')
    a('s_waitcnt lgkmcnt(0)')
    a('s_add_u32 %s, %s, 0x%x' % (S_TAG, S_E, TAGC))
    a('v_readlane_b32 s64, v12, 32')
    a('v_cvt_pk_bf16_f32 v14, v8, s65')
    a('v_mov_b32 v15, %s' % S_TAG)
    a('v_mov_b32 v13, s64')
    a('s_lshl_b32 s66, s2, 7')
    a('s_lshl_b32 s67, s3, 4')
    a('s_add_u32 s66, s66, s67')
    a('s_add_u32 s66, s66, 0x%x' % WS_STATS)
    a('s_mov_b64 exec, 1')
    a('buffer_store_dwordx4 v[12:15], off, %s, s66 sc1' % SRD_WS)
    a('s_mov_b64 exec, -1')
    stamp('stats published')


def p1_weights():
    a('s_cmp_eq_u32 s3, 3')
    a('s_cbranch_scc1 L_now', tag=('w3', 1))
    a('s_mov_b32 s64, 0x05040100')
    a('s_mov_b32 s65, 0x07060302')
    a('v_lshlrev_b32 v6, 4, v1')
    a('s_waitcnt vmcnt(1)')
    for phi in range(4):
        for q in range(4):
            e0, e1 = 2 * q, 2 * q + 1
            a('v_perm_b32 %s, %s, %s, %s' % (v(48 + 4 * phi + q), v(V_WL + 2 * e1 + phi // 2), v(V_WL + 2 * e0 + phi // 2),
                                             's65' if phi & 1 else 's64'))
        a('buffer_store_dwordx4 %s, v6, %s, s73 offen sc1' % (v(48 + 4 * phi, 4), SRD_WS))
        if phi < 3:
            a('s_add_u32 s73, s73, s74')
    a('s_branch L_kgen')
    a.label('L_now')
    a('s_waitcnt vmcnt(33)')
    a.label('L_kgen')


def cmul(d, x, z):
    a('v_pk_mul_f32 %s, %s, %s op_sel_hi:[1,0]' % (v(d, 2), v(x, 2), v(z, 2)))
    a('v_pk_fma_f32 %s, %s, %s, %s op_sel:[1,1,0] op_sel_hi:[0,1,1] neg_lo:[0,1,0]' % (v(d, 2), v(x, 2), v(z, 2), v(d, 2)))


def bf16round(r):
    a('v_cvt_pk_bf16_f32 %s, %s, %s' % (v(r), v(r), v(r)))
    a('v_and_b32 %s, 0xffff0000, %s' % (v(r), v(r)))


def kgen_tables():
    a('v_and_b32 v4, 7, v1')
    a('v_lshrrev_b32 v5, 1, v4')
    a('v_mul_u32_u24 v4, %d, v4' % (16 * 265))
    a('v_lshl_add_u32 v4, v5, 7, v4')
    a('v_bfe_u32 v5, v1, 3, 1')
    a('v_mul_u32_u24 v5, %d, v5' % KC_CH)
    a('v_add_u32 v4, v4, v5')
    a('v_mov_b32 v28, 0')
    a('v_mov_b32 v29, 0')
    a('v_mov_b32 v30, 0')
    a('v_mov_b32 v31, 0')
    a('ds_write_b128 v4, v[28:31] offset:%d' % L_KC)
    a('ds_write_b128 v4, v[28:31] offset:%d' % (L_KC + 16))
    a('s_lshr_b32 s64, s3, 1')
    a('s_lshl_b32 s64, s64, 4')
    a('s_lshr_b32 s64, %s, s64' % S_LD)
    a('s_lshl_b32 s64, s64, 16')
    a('v_mov_b32 v4, 0x%x' % LOG2E)
    a('v_mul_f32 v5, s64, v4')
    a('v_lshlrev_b32 v24, 16, v24')
    a('v_exp_f32 v5, v5')
    a('v_mul_f32 v24, v4, v24')
    a('v_lshlrev_b32 v25, 16, v25')
    a('v_exp_f32 v24, v24')
    a('v_lshlrev_b32 v26, 16, v26')
    a('v_lshlrev_b32 v27, 16, v27')
    bf16round(5)
    bf16round(24)
    a('v_mul_f32 v24, v24, v5')
    a('v_mul_f32 v25, v25, v5')
    a('v_add_f32 v5, v5, v5')
    a('v_mul_f32 v24, 0x%x, v24' % (LOG2E | 0x80000000))
    a('v_mul_f32 v25, 0x%x, v25' % INV2PI)
    A0 = 64
    a('v_mul_f32 %s, v26, v5' % v(A0))
    a('v_mul_f32 %s, v27, v5' % v(A0 + 1))
    Z1, Z8, Z256 = 10, 12, 14
    for z, p in ((Z1, 1.0), (Z8, 8.0), (Z256, 256.0)):
        import struct
        pb = struct.unpack('<I', struct.pack('<f', p))[0]
        if p == 1.0:
            a('v_exp_f32 v6, v24')
            a('v_fract_f32 v7, v25')
        else:
            a('v_mul_f32 v6, 0x%x, v24' % pb)
            a('v_mul_f32 v7, 0x%x, v25' % pb)
            a('v_exp_f32 v6, v6')
            a('v_fract_f32 v7, v7')
        a('v_cos_f32 %s, v7' % v(z))
        a('v_sin_f32 %s, v7' % v(z + 1))
        if z == Z8:
            a('v_pk_mul_f32 %s, %s, v[6:7] op_sel_hi:[1,0] neg_hi:[1,0]' % (v(z, 2), v(z, 2)))
        else:
            a('v_pk_mul_f32 %s, %s, v[6:7] op_sel_hi:[1,0]' % (v(z, 2), v(z, 2)))
    a('s_lshr_b32 s64, s3, 1')
    a('s_mul_i32 s64, s64, %d' % TAB_CH)
    a('s_lshl_b32 s65, %s, 8' % S_HALF)
    a('s_add_u32 s64, s64, s65')
    a('s_mov_b32 m0, s64')
    tmp = [16, 17, 18, 19]
    cnt = [0]

    def put(pair, row):
        t = tmp[cnt[0] % 4]
        cnt[0] += 1
        a('v_cvt_pk_bf16_f32 %s, %s, %s' % (v(t), v(pair), v(pair + 1)))
        a('ds_write_addtid_b32 %s offset:%d' % (v(t), row * PITCH))
    al = []
    AL = {p: A0 + 2 * p for p in range(9)}
    al.append(('put', AL[0], 0))
    for p in range(1, 9):
        al.append(('mul', AL[p], AL[p - 1], Z1))
        if p < 8:
            al.append(('put', AL[p], p))
    row = 8
    for blk, rhos in ((1, (0, 2, 4, 6, 8)), (2, (0, 4, 8)), (3, (0, 4, 8)), (4, (0, 8)), (5, (0, 8)), (6, (0, 8)), (7, (0, 8))):
        for rho in rhos:
            src = AL[rho]
            dst = src + 32 if src < A0 + 32 else src - 32
            al.append(('mul', dst, src, Z256))
            al.append(('put', dst, row))
            AL[rho] = dst
            row += 1
    assert row == 27
    be = []
    B0, B1 = 20, 22
    a('v_mov_b32 v8, 0x3f80')
    a('ds_write_addtid_b32 v8 offset:%d' % (27 * PITCH))
    be.append(('put', Z8, 28))
    cur = Z8
    for t in range(2, 32):
        dst = B0 if cur != B0 else B1
        be.append(('mul', dst, cur, Z8))
        be.append(('put', dst, 27 + t))
        cur = dst
    ia = ib = 0
    while ia < len(al) or ib < len(be):
        for lst, idx in ((al, 'a'), (be, 'b')):
            i = ia if idx == 'a' else ib
            if i < len(lst):
                op = lst[i]
                if op[0] == 'mul':
                    cmul(op[1], op[2], op[3])
                else:
                    put(op[1], op[2])
                if idx == 'a':
                    ia += 1
                else:
                    ib += 1
    a('s_cmp_eq_u32 %s, 0' % S_HALF)
    N0 = (0x76543210, 0xCBAAA988, 0xFFEEEDDD, 0x22111000)
    N1 = (0x44433333, 0x66655555, 0x88877777, 0xAAA99999)
    for k in range(4):
        a('s_mov_b32 s%d, 0x%x' % (64 + k, N0[k]))
        a('s_cselect_b32 s%d, s%d, 0x%x' % (64 + k, 64 + k, N1[k]))
    a('s_cselect_b32 s68, 24, 0')
    a('v_and_b32 v4, 31, v1')
    a('v_bfe_u32 v5, v1, 3, 2')
    a('v_mov_b32 v6, s64')
    for k in (1, 2, 3):
        a('v_cmp_eq_u32 vcc, %d, v5' % k)
        a('v_mov_b32 v7, s%d' % (64 + k))
        a('v_cndmask_b32 v6, v6, v7, vcc')
    a('v_and_b32 v7, 7, v1')
    a('v_lshlrev_b32 v7, 2, v7')
    a('v_bfe_u32 v6, v6, v7, 4')
    a('v_cmp_le_u32 vcc, s68, v4')
    a('v_add_u32 v7, 16, v6')
    a('s_lshr_b32 s64, s3, 1')
    a('s_mul_i32 s64, s64, %d' % TAB_CH)
    a('v_cndmask_b32 v6, v6, v7, vcc')
    a('v_lshrrev_b32 v5, 5, v1')
    a('v_lshl_add_u32 v5, v5, 4, s64')
    a('s_movk_i32 s65, %d' % PITCH)
    a('v_mad_u32_u24 v2, v6, s65, v5')
    a('v_mad_u32_u24 v3, v4, s65, v5')
    a('s_cmp_eq_u32 s3, 3')
    a('s_cbranch_scc1 L_b1', tag=('w3', 1))
    a('s_waitcnt vmcnt(0)')
    a.label('L_b1')
    a('s_waitcnt lgkmcnt(0)')
    a('s_barrier')
    stamp('tables done')
    a('s_cmp_lg_u32 s3, 0')
    a('s_cbranch_scc1 L_noflagw', tag=('w0', 0))
    a('s_lshl_b32 s66, s2, 7')
    a('s_add_u32 s66, s66, 0x%x' % (WS_STATS + 64))
    a('v_mov_b32 v15, %s' % S_TAG)
    a('s_mov_b64 exec, 1')
    a('buffer_store_dword v15, off, %s, s66 sc1' % SRD_WS)
    a('s_mov_b64 exec, -1')
    a.label('L_noflagw')


def kgen_mfma():
    FA, FB, ACC = 64, 128, 16
    AHEAD = 7

    def rd(ks):
        a('ds_read_b128 %s, v2 offset:%d' % (v(FA + 4 * ks, 4), 32 * ks))
        a('ds_read_b128 %s, v3 offset:%d' % (v(FB + 4 * ks, 4), 27 * PITCH + 32 * ks))
    for ks in range(AHEAD):
        rd(ks)
    a('v_and_b32 v4, 31, v1')
    a('v_lshrrev_b32 v5, 5, v1')
    a('v_lshlrev_b32 v6, 4, v4')
    a('v_lshl_add_u32 v6, v5, 3, v6')
    a('s_lshr_b32 s64, s3, 1')
    a('s_mul_i32 s64, s64, %d' % KC_CH)
    a('s_lshl_b32 s65, %s, 11' % S_HALF)
    a('s_add_u32 s64, s64, s65')
    a('s_add_u32 s64, s64, %d' % (L_KC + 32))
    a('v_add_u32 v6, s64, v6')
    a('v_and_b32 v4, v4, v5')
    a('v_and_b32 v4, %s, v4' % S_HALF)
    a('v_cmp_eq_u32 vcc, 1, v4')
    for ks in range(16):
        left = min(16, ks + AHEAD) - ks - 1
        a('s_waitcnt lgkmcnt(%d)' % (2 * left))
        a('v_mfma_f32_32x32x16_bf16 %s, %s, %s, %s' % (v(ACC, 16), v(FA + 4 * ks, 4), v(FB + 4 * ks, 4), v(ACC, 16) if ks else '0'))
        if ks + AHEAD < 16:
            rd(ks + AHEAD)
    for b in range(4):
        r = ACC + 4 * b
        a('v_cndmask_b32 %s, %s, %s, vcc' % (v(r), v(r), v(r + 3)))
        a('v_cvt_pk_bf16_f32 %s, %s, %s' % (v(r), v(r), v(r + 1)))
        a('v_cvt_pk_bf16_f32 %s, %s, %s' % (v(r + 1), v(r + 2), v(r + 3)))
        a('ds_write_b64 v6, %s offset:%d' % (v(r, 2), 512 * b))
    a('v_lshlrev_b32 v4, 4, v0')
    a('v_add_u32 v4, %d, v4' % (L_KC + 16))
    a('s_waitcnt lgkmcnt(0)')
    a('s_barrier')
    stamp('K linear done')


def kgen_expand():
    P = [64, 96]
    for ch in range(2):
        a('ds_read_b128 %s, v4 offset:%d' % (v(P[ch], 4), ch * KC_CH))
        a('ds_read_b128 %s, v4 offset:%d' % (v(P[ch] + 4, 4), ch * KC_CH + 16))
    a('v_and_b32 v5, 31, v1')
    a('v_lshrrev_b32 v6, 5, v1')
    a('v_mul_u32_u24 v6, %d, v6' % U_CH)
    a('v_lshl_add_u32 v5, v5, 4, v6')
    for k in range(4):
        a('v_mov_b32 %s, 0' % v(8 + k))
    a('ds_write_b128 v5, v[8:11] offset:%d' % (L_U + 4096))
    for ch in range(2):
        p = P[ch]
        q, pp, qq = p + 8, p + 16, p + 24
        a('s_waitcnt lgkmcnt(%d)' % (3 if ch == 0 else 8))
        for x in range(7):
            a('v_alignbit_b32 %s, %s, %s, 16' % (v(q + x), v(p + x + 1), v(p + x)))
        a('ds_write_b128 v4, %s offset:%d' % (v(p + 2, 4), ch * KC_CH + CB[4]))
        a('ds_write_b128 v4, %s offset:%d' % (v(q, 4), ch * KC_CH + CB[1]))
        a('ds_write_b128 v4, %s offset:%d' % (v(q + 2, 4), ch * KC_CH + CB[5]))
        for x in range(3):
            a('v_pk_mov_b32 %s, %s, %s op_sel:[1,0]' % (v(pp + 2 * x, 2), v(p + 2 * x, 2), v(p + 2 * x + 2, 2)))
        a('ds_write_b128 v4, %s offset:%d' % (v(pp, 4), ch * KC_CH + CB[2]))
        a('ds_write_b128 v4, %s offset:%d' % (v(pp + 2, 4), ch * KC_CH + CB[6]))
        for x in range(3):
            a('v_pk_mov_b32 %s, %s, %s op_sel:[1,0]' % (v(qq + 2 * x, 2), v(q + 2 * x, 2), v(q + 2 * x + 2, 2)))
        a('ds_write_b128 v4, %s offset:%d' % (v(qq, 4), ch * KC_CH + CB[3]))
        a('ds_write_b128 v4, %s offset:%d' % (v(qq + 2, 4), ch * KC_CH + CB[7]))
    a('s_cmp_lg_u32 s3, 3')
    a('s_cbranch_scc1 L_bx', tag=('w3', 0))
    a('s_waitcnt vmcnt(0)')
    a.label('L_bx')
    a('s_waitcnt lgkmcnt(0)')
    a('s_barrier')
    stamp('gather + K copies done')


X0, X1, XH = 32, 40, 48
G = 64
V_KA, V_UA, V_BA = 2, 3, 4


def sync_a():
    a('v_lshlrev_b32 v5, 3, v0')
    a('v_add_u32 v5, %d, v5' % L_XG)
    for i in range(4):
        a('ds_read_b64 %s, v5 offset:%d' % (v(16 + 2 * i, 2), 2048 * i))
    a('v_lshrrev_b32 v6, 2, v0')
    a('v_and_b32 v7, 3, v0')
    a('v_lshlrev_b32 v7, 4, v7')
    a('v_lshl_or_b32 v6, v6, 7, v7')
    a('v_lshlrev_b32 v7, 7, v0')
    for i in range(4):
        a('s_mov_b32 s%d, 0x%x' % (64 + i, WS_STATS + 8192 * i))
    a('s_mov_b32 s68, %d' % OPT['spin'])

    def issue():
        for i in range(4):
            a('buffer_load_dwordx4 %s, v6, %s, s%d offen sc1' % (v(G + 4 * i, 4), SRD_WS, 64 + i))
        a('buffer_load_dword v80, v7, %s, s64 offen offset:64 sc1' % SRD_WS)
    issue()
    a('s_waitcnt lgkmcnt(0)')
    for i in range(4):
        for j in range(2):
            a('v_lshlrev_b32 %s, 16, %s' % (v(X0 + 2 * i + j), v(16 + 2 * i + j)))
            a('v_and_b32 %s, 0xffff0000, %s' % (v(X1 + 2 * i + j), v(16 + 2 * i + j)))
    for i in range(8):
        a('v_pk_mul_f32 %s, %s, 0.5 op_sel_hi:[1,0]' % (v(XH + 2 * i, 2), v(X0 + 2 * i, 2)))
    a('s_lshl_b32 s70, %s, 16' % S_DS)
    a('s_and_b32 s72, %s, 0xffff0000' % S_DS)
    a('v_mov_b32 v8, s70')
    a('v_mov_b32 v9, s72')
    a('v_pk_mul_f32 v[8:9], v[8:9], 0.5 op_sel_hi:[1,0]')
    a('v_lshlrev_b32 v10, 2, v0')
    a('v_sub_u32 v10, %d, v10' % (L_U + 1020))
    a('v_lshlrev_b32 v11, 3, v0')
    a('v_and_b32 v12, 15, v1')
    a('v_lshrrev_b32 v13, 4, v1')
    a('v_add_u32 v14, 1, v12')
    a('v_and_b32 v15, 7, v14')
    a('v_lshrrev_b32 v14, 3, v14')
    a('v_add_u32 v14, v14, v13')
    a('v_mul_u32_u24 v2, %d, v15' % (16 * 265))
    a('v_lshrrev_b32 v15, 1, v15')
    a('v_lshl_add_u32 v2, v15, 7, v2')
    a('v_lshl_add_u32 v2, v14, 4, v2')
    a('s_lshr_b32 s73, s3, 1')
    a('s_mul_i32 s74, s73, %d' % KC_CH)
    a('s_lshl_b32 s75, %s, 8' % S_HALF)
    a('s_add_u32 s74, s74, s75')
    a('s_add_u32 s74, s74, %d' % L_KC)
    a('v_add_u32 v2, s74, v2')
    a('s_mul_i32 s74, s73, %d' % U_CH)
    a('s_add_u32 s74, s74, s75')
    a('s_add_u32 s74, s74, %d' % (L_U + 4064 - 3584))
    a('v_lshlrev_b32 v14, 5, v12')
    a('v_lshl_add_u32 v3, v13, 4, s74')
    a('v_sub_u32 v3, v3, v14')
    a('s_lshl_b32 s74, s73, 13')
    a('s_add_u32 s74, s74, %d' % L_BASE)
    a('v_lshlrev_b32 v14, 6, v12')
    a('v_lshl_add_u32 v4, v13, 4, s74')
    a('v_add_u32 v4, v4, v14')
    a.label('L_pollA')
    a('s_waitcnt vmcnt(0)')
    a('v_cmp_eq_u32 vcc, %s, v80' % S_TAG)
    for i in range(4):
        a('v_cmp_eq_u32 s[74:75], %s, %s' % (S_TAG, v(G + 4 * i + 3)))
        a('s_and_b64 vcc, vcc, s[74:75]')
    a('s_cmp_eq_u64 vcc, exec')
    a('s_cbranch_scc1 L_gotA', tag=('pollA', 1))
    a('s_sub_u32 s68, s68, 1')
    a('s_cbranch_scc1 L_gotA', tag=('pollA', 1))
    issue()
    a('s_branch L_pollA')
    a.label('L_gotA')
    stamp('sync A passed')
    for i in range(4):
        g = G + 4 * i
        a('v_lshlrev_b32 v16, 16, %s' % v(g + 2))
        a('v_and_b32 v17, 0xffff0000, %s' % v(g + 2))
        a('v_pk_mul_f32 v[16:17], v[16:17], %s neg_lo:[1,0] neg_hi:[1,0]' % v(g, 2))
        for ch in range(2):
            x = (X0, X1)[ch] + 2 * i
            xh = XH + 8 * ch + 2 * i
            u = 18 + 2 * ch
            a('v_pk_fma_f32 %s, %s, %s, v[16:17]' % (v(u, 2), v(x, 2), v(g, 2)))
            a('v_pk_fma_f32 %s, %s, v[8:9], %s op_sel:[0,%d,0] op_sel_hi:[1,%d,1]' % (v(xh, 2), v(u, 2), v(xh, 2), ch, ch))
            a('v_cvt_pk_bf16_f32 %s, %s, %s' % (v(22 + ch), v(u + 1), v(u)))
            a('ds_write_b32 v10, %s offset:%d' % (v(22 + ch), ch * U_CH + 1024 * (3 - i)))
            a('ds_write_b64 v11, %s offset:%d' % (v(xh, 2), L_BASE + ch * 8192 + 2048 * i))
    a('s_lshl_b32 s64, %s, 17' % S_N)
    a('s_lshl_b32 s65, s3, 14')
    a('s_add_u32 s64, s64, s65')
    a('s_add_u32 s64, s64, 0x%x' % (WS_W1F + 8 * 65536))
    a('s_add_u32 s65, s64, 65536')
    a('s_lshl_b32 s66, %s, 16' % S_N)
    a('s_lshl_b32 s67, s3, 14')
    a('s_add_u32 s66, s66, s67')
    a('s_add_u32 s66, s66, 0x%x' % WS_W1F)
    a('v_lshlrev_b32 v5, 4, v1')
    a('s_waitcnt lgkmcnt(0)')
    a('s_barrier')
    stamp('u in LDS')
    a('s_or_b32 s67, s2, s3')
    a('s_cmp_lg_u32 s67, 0')
    a('s_cbranch_scc1 L_noepoch', tag=('w0', 0))
    a('s_add_u32 s67, %s, 1' % S_E)
    a('v_mov_b32 v15, s67')
    a('s_mov_b64 exec, 1')
    a('buffer_store_dword v15, off, %s, 0 sc1' % SRD_WS)
    a('s_mov_b64 exec, -1')
    a.label('L_noepoch')


def w1_reg(c, kk, t):
    return 48 * c + 12 * kk + 4 * t


def dump_k():
    if not OPT['dump']:
        return
    c = OPT['dump'] - 1
    a('v_lshlrev_b32 v16, 4, v0')
    a('v_add_u32 v17, %d, v16' % (L_KC + 32 + CB[c]))
    a('ds_read_b128 v[20:23], v17')
    a('ds_read_b128 v[24:27], v17 offset:%d' % KC_CH)
    a('ds_read_b128 v[28:31], v16 offset:%d' % L_U)
    a('ds_read_b128 v[32:35], v16 offset:%d' % (L_U + U_CH))
    a('s_lshl_b32 s70, %s, 14' % S_CP)
    a('s_add_u32 s70, s70, 0x%x' % WS_DUMP)
    a('s_waitcnt lgkmcnt(0)')
    for k in range(4):
        a('buffer_store_dwordx4 %s, v16, %s, s70 offen' % (v(20 + 4 * k, 4), SRD_WS))
        a('s_add_u32 s70, s70, 4096')
    a('s_waitcnt vmcnt(0)')


def conv():
    wl = []
    for c in range(4):
        for kk in range(4):
            for t in range(3):
                wl.append(['s_add_u32 s70, s%d, %d' % (64 + t, 4096 * kk),
                           'buffer_load_dwordx4 %s, v5, %s, s70 offen offset:%d sc1' % (ac(w1_reg(c, kk, t), 4), SRD_WS, 1024 * c)])
    KF = [64, 128]
    UF = [96, 160]
    ACC = 192
    pend = []

    def rd(dst, addr, off):
        a('ds_read_b128 %s, %s offset:%d' % (v(dst, 4), addr, off))
        pend.append(dst)

    def wait_for(regs):
        last = max((pend.index(r) for r in regs if r in pend), default=-1)
        if last >= 0:
            a('s_waitcnt lgkmcnt(%d)' % (len(pend) - 1 - last))
            del pend[:last + 1]

    def reads_for(r, T):
        s = r & 1
        lst = [(KF[s] + 4 * T, 'v2', 512 * T + 64 * r), (UF[s] + 4 * T, 'v3', 512 * (7 - T) + 64 * r)]
        if r == 0:
            lst.append((ACC + 4 * T, 'v4', 1024 * T))
        return lst
    queue = [x for r in range(4) for T in range(8) for x in reads_for(r, T)]
    qi = [0]

    def pump(n):
        for _ in range(n):
            if qi[0] < len(queue) and len(pend) < 14:
                rd(*queue[qi[0]])
                qi[0] += 1
    pump(12)
    nm = 0
    wi = 0
    limit = {r: sum(len(reads_for(rr, T)) for rr in range(min(r + 2, 4)) for T in range(8)) for r in range(4)}
    for r in range(4):
        s = r & 1
        for T in range(8):
            for q in range(T + 1):
                need = [KF[s] + 4 * q, UF[s] + 4 * (T - q)]
                if r == 0:
                    need.append(ACC + 4 * T)
                while any(x[0] in need and k >= qi[0] and k < limit[r] and (k < limit.get(r - 1, 0) or True)
                          for k, x in enumerate(queue) if limit.get(r - 2, 0) <= k < (limit[r - 1] if r else limit[0] - 16)):
                    rd(*queue[qi[0]])
                    qi[0] += 1
                wait_for(need)
                a('v_mfma_f32_16x16x32_bf16 %s, %s, %s, %s' % (v(ACC + 4 * T, 4), v(KF[s] + 4 * q, 4), v(UF[s] + 4 * (T - q), 4), v(ACC + 4 * T, 4)))
                nm += 1
                if qi[0] < limit[r] and len(pend) < 14 and (nm % 2 == 0 or nm < 16):
                    rd(*queue[qi[0]])
                    qi[0] += 1
                elif wi < len(wl) and nm >= 4:
                    for x in wl[wi]:
                        a(x)
                    wi += 1
    assert wi == len(wl) and qi[0] == len(queue), (wi, qi)
    stamp('conv mfma done')
    a('s_lshl_b32 s64, s3, 12')
    a('s_add_u32 s64, s64, %d' % L_CX)
    a('s_xor_b32 s65, s3, 1')
    a('s_lshl_b32 s65, s65, 12')
    a('s_add_u32 s65, s65, %d' % L_CX)
    a('v_add_u32 v6, s64, v5')
    a('v_add_u32 v7, s65, v5')
    a('v_and_b32 v8, 7, v1')
    a('s_and_b32 s66, %s, 6' % S_D)
    a('v_xor_b32 v8, s66, v8')
    a('v_lshlrev_b32 v8, 4, v8')
    a('v_bfe_u32 v9, v1, 4, 1')
    a('v_lshl_or_b32 v8, v9, 18, v8')
    a('v_bfe_u32 v9, v1, 3, 1')
    a('v_lshl_or_b32 v8, v9, 17, v8')
    a('v_lshrrev_b32 v9, 5, v1')
    a('v_lshl_or_b32 v8, v9, 16, v8')
    a('s_lshl_b32 s66, %s, 20' % S_HALF)
    a('s_lshl_b32 s67, %s, 7' % S_D)
    a('s_add_u32 s66, s66, s67')
    a('s_add_u32 s66, s66, 0x%x' % WS_HT)
    a('s_add_u32 s67, s66, 0x80000')
    a('s_cmp_eq_u32 %s, 1' % S_HALF)
    a('s_cbranch_scc1 L_cx1', tag=('half', 1))
    for half in range(2):
        own, oth = ACC + 16 * half, ACC + 16 * (1 - half)
        if half:
            a.label('L_cx1')
        for k in range(4):
            a('ds_write_b128 v6, %s offset:%d' % (v(oth + 4 * k, 4), 1024 * k))
        a('s_waitcnt lgkmcnt(0)')
        a('s_barrier')
        for k in range(4):
            a('ds_read_b128 %s, v7 offset:%d' % (v(64 + 4 * k, 4), 1024 * k))
        for s in range(2):
            a('s_waitcnt lgkmcnt(%d)' % (2 - 2 * s))
            for k in (2 * s, 2 * s + 1):
                for x in (0, 2):
                    a('v_pk_add_f32 %s, %s, %s' % (v(own + 4 * k + x, 2), v(own + 4 * k + x, 2), v(64 + 4 * k + x, 2)))
            o = 80 + 4 * s
            for k in range(2):
                for x in range(2):
                    r = own + 4 * (2 * s + k) + 2 * x
                    a('v_cvt_pk_bf16_f32 %s, %s, %s' % (v(o + 2 * k + x), v(r), v(r + 1)))
            a('v_permlane16_swap_b32 %s, %s' % (v(o), v(o + 2)))
            a('v_permlane16_swap_b32 %s, %s' % (v(o + 1), v(o + 3)))
            a('buffer_store_dwordx4 %s, v8, %s, s%d offen sc1' % (v(o, 4), SRD_WS, 66 + s))
        if half == 0:
            a('s_branch L_cxdone')
    a.label('L_cxdone')
    stamp('h stores issued')
    a('s_waitcnt vmcnt(0)')
    a('s_barrier')
    stamp('h stores drained')
    a('s_cmp_lg_u32 s3, 0')
    a('s_cbranch_scc1 L_noflagb', tag=('w0', 0))
    a('s_lshl_b32 s66, %s, 7' % S_CP)
    a('s_add_u32 s66, s66, 0x%x' % WS_FLAGB)
    a('v_mov_b32 v15, %s' % S_TAG)
    a('s_mov_b64 exec, 1')
    a('buffer_store_dword v15, off, %s, s66 sc1' % SRD_WS)
    a('s_mov_b64 exec, -1')
    a.label('L_noflagb')


G_ACC = 16
G_CS = 64
G_BF = 80
G_HS = 112
V_TR = 8
V_S1, V_S2 = 12, 13


def w2_reg(kk, c):
    i = 4 * kk + c
    if i < 16:
        return 192 + 4 * i
    return 4 * (i - 16)


def gemm1():
    for k in range(4):
        a('v_mov_b32 %s, %s' % (v(G_BF + k), S_ONES))
    a('v_lshlrev_b32 v7, 7, v0')
    a('s_mov_b32 s64, 0x%x' % WS_FLAGB)
    a('s_mov_b32 s68, %d' % OPT['spin'])
    for c in range(4):
        for kk in range(4):
            for t in range(3):
                first = (c == 0 and kk == 0)
                a('v_mfma_f32_16x16x32_bf16 %s, %s, %s, %s' % (v(G_CS + 4 * t, 4), ac(w1_reg(c, kk, t), 4), v(G_BF, 4), '0' if first else v(G_CS + 4 * t, 4)))
    a('v_bfe_u32 v2, v1, 2, 4')
    a('v_bfe_u32 v3, v1, 3, 2')
    a('v_xor_b32 v3, s3, v3')
    a('v_and_b32 v4, 3, v1')
    a('v_lshlrev_b32 v4, 3, v4')
    a('v_lshl_or_b32 v4, v2, 7, v4')
    a('v_add_u32 v4, %d, v4' % L_HL)
    for s in range(4):
        a('v_xor_b32 v2, %d, v3' % s)
        a('v_lshl_add_u32 %s, v2, 5, v4' % v(V_TR + s))
    a('s_lshl_b32 s65, s3, 14')
    a('s_add_u32 s66, s65, %d' % L_HL)
    a('v_add_u32 v6, s66, v5')
    a('s_lshl_b32 s66, %s, 16' % S_MT)
    a('s_add_u32 s65, s65, s66')
    a('s_add_u32 s65, s65, 0x%x' % WS_HT)
    a('s_mul_i32 s66, %s, 44' % S_N)
    a('s_mul_i32 s67, s3, 11')
    a('s_add_u32 s66, s66, s67')
    a('s_lshl_b32 s66, s66, 12')
    a('s_add_u32 s66, s66, 0x%x' % WS_W2F)
    a('v_mov_b32 %s, 0' % v(V_S1))
    a('v_mov_b32 %s, 0' % v(V_S2))
    a.label('L_pollB')
    a('buffer_load_dword v14, v7, %s, s64 offen sc1' % SRD_WS)
    a('s_waitcnt vmcnt(0)')
    a('v_cmp_eq_u32 vcc, %s, v14' % S_TAG)
    a('s_cmp_eq_u64 vcc, exec')
    a('s_cbranch_scc1 L_gotB', tag=('pollB', 1))
    a('s_sub_u32 s68, s68, 1')
    a('s_cbranch_scc0 L_pollB')
    a.label('L_gotB')
    stamp('sync B passed')
    vm = []
    for q in range(16):
        a('buffer_load_dwordx4 %s, v5, %s, s65 offen offset:%d sc1' % (v(G_HS + 4 * q, 4), SRD_WS, 1024 * (q % 4)))
        vm.append(('h', q))
        if q % 4 == 3 and q < 15:
            a('s_add_u32 s65, s65, 4096')
    lg = []

    def stage(c):
        last = vm.index(('h', 4 * c + 3))
        a('s_waitcnt vmcnt(%d)' % (len(vm) - 1 - last))
        del vm[:last + 1]
        for q in range(4 * c, 4 * c + 4):
            a('ds_write_b128 v6, %s offset:%d' % (v(G_HS + 4 * q, 4), 1024 * q))
            lg.append(('w', q))

    def trread(step, s, eps):
        c, kk = divmod(step, 4)
        ks = 4 * kk + c
        a('ds_read_b64_tr_b16 %s, %s offset:%d' % (v(G_BF + 16 * (step & 1) + 4 * s + 2 * eps, 2), v(V_TR + s), 4096 * ks + 2048 * eps))
        lg.append(('r', step, s, eps))

    def lwait(item):
        if item in lg:
            last = lg.index(item)
            a('s_waitcnt lgkmcnt(%d)' % (len(lg) - 1 - last))
            del lg[:last + 1]
    w2i = [0]

    def w2load():
        i = w2i[0]
        kk, c = divmod(i, 4)
        a('buffer_load_dwordx4 %s, v5, %s, s66 offen offset:%d sc1' % (ac(w2_reg(kk, c), 4), SRD_WS, 1024 * c))
        vm.append(('w2', i))
        if c == 3:
            a('s_add_u32 s66, s66, 4096')
        w2i[0] += 1
    stage(0)
    lwait(('w', 3))
    a('s_barrier')
    stamp('h chunk 0 staged')
    for s in range(4):
        for eps in range(2):
            trread(0, s, eps)
    w2cap = {0: 16, 1: 28, 2: 40, 3: 44}
    for step in range(16):
        c, kk = divmod(step, 4)
        if kk == 2 and c < 3:
            stage(c + 1)
        if kk == 3 and c < 3:
            lwait(('w', 4 * c + 7))
            a('s_barrier')
        fill = []
        if step < 15:
            fill = [(step + 1, s, eps) for s in range(4) for eps in range(2)]
        for s in range(4):
            lwait(('r', step, s, 1))
            b = G_BF + 16 * (step & 1) + 4 * s
            for t in range(3):
                acc = G_ACC + 16 * t + 4 * s
                a('v_mfma_f32_16x16x32_bf16 %s, %s, %s, %s' % (v(acc, 4), ac(w1_reg(c, kk, t), 4), v(b, 4), v(acc, 4) if step else '0'))
                if t < 2 and fill:
                    trread(*fill.pop(0))
                if t == 2 and w2i[0] < w2cap[c]:
                    w2load()
                k = 3 * s + t
                if k < 8:
                    b0 = G_BF + 16 * (step & 1)
                    if k % 2 == 0:
                        a('v_dot2c_f32_bf16 %s, %s, %s' % (v(V_S1), S_ONES, v(b0 + k // 2)))
                    else:
                        a('v_dot2c_f32_bf16 %s, %s, %s' % (v(V_S2), v(b0 + k // 2), v(b0 + k // 2)))
    assert w2i[0] == 44
    stamp('gemm1 mfma done')
    for sw in ('v_permlane16_swap_b32', 'v_permlane32_swap_b32'):
        a('v_mov_b32 v2, %s' % v(V_S1))
        a('v_mov_b32 v3, %s' % v(V_S2))
        a('%s %s, v2' % (sw, v(V_S1)))
        a('%s %s, v3' % (sw, v(V_S2)))
        a('v_add_f32 %s, %s, v2' % (v(V_S1), v(V_S1)))
        a('v_add_f32 %s, %s, v3' % (v(V_S2), v(V_S2)))
    a('v_mul_f32 v2, 0xbb000000, %s' % v(V_S1))
    a('v_mul_f32 v3, v2, v2')
    a('s_mov_b32 s64, 0x3b000000')
    a('v_fma_f32 v3, %s, s64, -v3' % v(V_S2))
    a('v_max_f32 v3, 0, v3')
    a('v_add_f32 v3, 0x3727c5ac, v3')
    a('v_rsq_f32 v12, v3')
    a('v_and_b32 v4, 15, v1')
    a('v_lshlrev_b32 v4, 3, v4')
    a('s_lshl_b32 s64, s3, 7')
    a('s_add_u32 s64, s64, %d' % L_ST2)
    a('v_mul_f32 v3, 0x%x, v12' % (LOG2E | 0x80000000))
    a('v_add_u32 v4, s64, v4')
    a('ds_write_b64 v4, v[2:3]')
    a('s_lshr_b32 s64, s3, 1')
    a('s_lshl_b32 s64, s64, 12')
    a('s_add_u32 s64, s64, %d' % L_TB)
    a('s_lshl_b32 s65, s3, 10')
    a('v_xor_b32 v8, s65, v5')
    a('s_waitcnt lgkmcnt(0)')
    a('s_barrier')
    ST = 80
    for s in range(4):
        a('v_xor_b32 v2, %d, v4' % (128 * s))
        a('ds_read_b64 %s, v2' % v(ST + 2 * s, 2))
    for s in range(1, 4):
        a('v_xor_b32 %s, %d, v8' % (v(8 + s), 1024 * s))
    a('s_lshl_b32 s65, %s, 3' % S_HALF)
    a('s_add_u32 s65, s65, s64')
    a('s_mul_i32 s66, %s, 48' % S_MT)
    a('s_mul_i32 s67, %s, 6' % S_N)
    a('s_add_u32 s66, s66, s67')
    a('s_lshr_b32 s67, s3, 1')
    a('s_add_u32 s67, s67, s66')
    a('s_lshl_b32 s67, s67, 12')
    a('s_add_u32 s67, s67, 0x%x' % WS_HF)
    a('s_add_u32 s66, s66, s3')
    a('s_lshl_b32 s66, s66, 12')
    a('s_add_u32 s66, s66, 0x%x' % (WS_HF + 2 * 4096))
    a('s_waitcnt lgkmcnt(0)')
    PK = 112
    TMP = 88

    def silu(t, s, dst):
        acc = G_ACC + 16 * t + 4 * s
        st = v(ST + 2 * s, 2)
        z = TMP
        for x in (0, 2):
            a('v_pk_fma_f32 %s, %s, %s, %s op_sel_hi:[1,0,1]' % (v(acc + x, 2), v(G_CS + 4 * t + x, 2), st, v(acc + x, 2)))
        for x in (0, 2):
            a('v_pk_mul_f32 %s, %s, %s op_sel:[0,1] op_sel_hi:[1,1]' % (v(z + x, 2), v(acc + x, 2), st))
        for x in range(4):
            a('v_exp_f32 %s, %s' % (v(z + x), v(z + x)))
        for x in (0, 2):
            a('v_pk_add_f32 %s, %s, 1.0 op_sel_hi:[1,0]' % (v(z + x, 2), v(z + x, 2)))
        for x in range(4):
            a('v_rcp_f32 %s, %s' % (v(z + x), v(z + x)))
        for x in (0, 2):
            a('v_pk_mul_f32 %s, %s, %s' % (v(z + x, 2), v(z + x, 2), v(acc + x, 2)))
        for x in (0, 2):
            a('v_cvt_pk_bf16_f32 %s, %s, %s' % (v(dst + x // 2), v(z + x), v(z + x + 1)))
    for s in range(4):
        silu(2, s, PK + 16 + 2 * s)
        a('v_add_u32 v2, s65, %s' % v(8 + s))
        a('ds_write_b64 v2, %s' % v(PK + 16 + 2 * s, 2))
    for s in range(4):
        silu(0, s, PK + 4 * s)
        silu(1, s, PK + 4 * s + 2)
        a('buffer_store_dwordx4 %s, %s, %s, s66 offen sc1' % (v(PK + 4 * s, 4), v(8 + s), SRD_WS))
        if s == 1:
            a('s_waitcnt lgkmcnt(0)')
            a('s_barrier')
            for k, sl in enumerate((0, 2)):
                a('v_add_u32 v2, s64, %s' % v(8 + sl))
                a('ds_read_b128 %s, v2' % v(PK + 24 + 4 * k, 4))
        if s == 2:
            a('s_waitcnt lgkmcnt(0)')
            for k, sl in enumerate((0, 2)):
                a('buffer_store_dwordx4 %s, %s, %s, s67 offen sc1' % (v(PK + 24 + 4 * k, 4), v(8 + sl), SRD_WS))
    stamp('H stores issued')
    a('s_waitcnt vmcnt(0)')
    a('s_barrier')
    stamp('H stores drained')
    a('s_lshl_b32 s64, %s, 10' % S_MT)
    a('s_add_u32 s64, s64, 0x%x' % WS_FLAGC)
    a('s_cmp_lg_u32 s3, 0')
    a('s_cbranch_scc1 L_noflagc', tag=('w0', 0))
    a('s_lshl_b32 s66, %s, 7' % S_N)
    a('s_add_u32 s66, s66, s64')
    a('v_mov_b32 v15, %s' % S_TAG)
    a('s_mov_b64 exec, 1')
    a('buffer_store_dword v15, off, %s, s66 sc1' % SRD_WS)
    a('s_mov_b64 exec, -1')
    a.label('L_noflagc')


H_F = 64
O_ACC0 = 240
O_ACCA = 144
RES = 16


def gemm2():
    a('v_bfe_u32 v2, v1, 2, 2')
    a('v_lshrrev_b32 v3, 4, v1')
    a('v_lshl_add_u32 v2, v3, 4, v2')
    a('v_bfe_u32 v3, v1, 3, 1')
    a('v_xor_b32 v3, s3, v3')
    a('v_and_b32 v4, 3, v1')
    a('v_lshlrev_b32 v4, 3, v4')
    a('v_lshl_or_b32 v4, v3, 5, v4')
    a('v_lshl_add_u32 v4, v2, 7, v4')
    a('s_lshl_b32 s65, %s, 13' % S_N)
    a('s_add_u32 s65, s65, %d' % L_HL)
    a('v_xor_b32 v3, 64, v4')
    a('v_add_u32 v4, s65, v4')
    a('v_add_u32 v3, s65, v3')
    for rho in range(4):
        a('ds_read_b64_tr_b16 %s, %s offset:%d' % (v(RES + 2 * rho, 2), 'v3' if rho & 1 else 'v4', 512 * rho))
    a('v_and_b32 v7, 7, v1')
    a('v_lshlrev_b32 v7, 7, v7')
    a('s_mov_b32 s68, %d' % OPT['spin'])
    a('s_mul_i32 s66, %s, 48' % S_MT)
    a('s_mul_i32 s67, s3, 11')
    a('s_add_u32 s66, s66, s67')
    a('s_lshl_b32 s66, s66, 12')
    a('s_add_u32 s66, s66, 0x%x' % WS_HF)
    a('v_and_b32 v2, 7, v1')
    a('v_bfe_u32 v3, v1, 3, 1')
    a('v_lshl_or_b32 v2, v3, 4, v2')
    a('v_lshrrev_b32 v3, 4, v1')
    a('v_lshlrev_b32 v3, 5, v3')
    a('v_lshl_or_b32 v13, v2, 10, v3')
    a('s_lshr_b32 s70, %s, 1' % S_MT)
    a('s_lshl_b32 s70, s70, 7')
    a('s_and_b32 s71, %s, 1' % S_MT)
    a('s_lshl_b32 s71, s71, 3')
    a('s_add_u32 s70, s70, s71')
    a('s_lshl_b32 s71, s3, 5')
    a('s_add_u32 s70, s70, s71')
    a('s_lshl_b32 s70, s70, 10')
    a('s_lshl_b32 s71, %s, 7' % S_N)
    a('s_add_u32 s70, s70, s71')
    a('s_waitcnt lgkmcnt(0)')
    for k in range(8):
        a('v_lshlrev_b32 %s, 16, %s' % (v(24 + 2 * k), v(RES + k)))
        a('v_and_b32 %s, 0xffff0000, %s' % (v(25 + 2 * k), v(RES + k)))
    a.label('L_pollC')
    a('buffer_load_dword v14, v7, %s, s64 offen sc1' % SRD_WS)
    a('s_waitcnt vmcnt(0)')
    a('v_cmp_eq_u32 vcc, %s, v14' % S_TAG)
    a('s_cmp_eq_u64 vcc, exec')
    a('s_cbranch_scc1 L_gotC', tag=('pollC', 1))
    a('s_sub_u32 s68, s68, 1')
    a('s_cbranch_scc0 L_pollC')
    a.label('L_gotC')
    stamp('sync C passed')
    AH = OPT.get('h_ahead', 6)
    issued = [0]

    def hload():
        i = issued[0]
        kk, s = divmod(i, 4)
        a('buffer_load_dwordx4 %s, %s, %s, s66 offen sc1' % (v(H_F + 4 * i, 4), v(8 + s), SRD_WS))
        if s == 3:
            a('s_add_u32 s66, s66, 4096')
        issued[0] += 1
    for _ in range(4 * AH):
        hload()
    for kk in range(11):
        for s in range(4):
            i = 4 * kk + s
            a('s_waitcnt vmcnt(%d)' % (issued[0] - 1 - i))
            for c in range(4):
                acc = v(O_ACC0 + 4 * c, 4) if s == 0 else ac(O_ACCA + 16 * (s - 1) + 4 * c, 4)
                a('v_mfma_f32_16x16x32_bf16 %s, %s, %s, %s' % (acc, ac(w2_reg(kk, c), 4), v(H_F + 4 * i, 4), acc if kk else '0'))
                if c == 0 and issued[0] < 44:
                    hload()
    stamp('gemm2 mfma done')
    for s in range(1, 4):
        a('s_xor_b32 s64, s3, %d' % s)
        a('s_mul_i32 s64, s64, 12288')
        a('s_add_u32 s64, s64, %d' % (L_RED + 4096 * (s - 1)))
        a('v_add_u32 %s, s64, v5' % v(1 + s))
    a('s_mul_i32 s64, s3, 12288')
    a('v_add_u32 v6, s64, v5')
    for s in range(1, 4):
        for c in range(4):
            a('ds_write_b128 %s, %s offset:%d' % (v(1 + s), ac(O_ACCA + 16 * (s - 1) + 4 * c, 4), 1024 * c))
    a('s_waitcnt lgkmcnt(0)')
    a('s_barrier')
    for s in range(3):
        for c in range(4):
            a('ds_read_b128 %s, v6 offset:%d' % (v(64 + 16 * s + 4 * c, 4), L_RED + 4096 * s + 1024 * c))
    for s in range(3):
        a('s_waitcnt lgkmcnt(%d)' % (8 - 4 * s))
        for x in range(0, 16, 2):
            a('v_pk_add_f32 %s, %s, %s' % (v(O_ACC0 + x, 2), v(O_ACC0 + x, 2), v(64 + 16 * s + x, 2)))
    for rho in range(4):
        for c in range(4):
            a('v_fma_f32 %s, %s, v12, %s' % (v(24 + 4 * rho + c), v(O_ACC0 + 4 * c + rho), v(24 + 4 * rho + c)))
        for k in range(2):
            a('v_cvt_pk_bf16_f32 %s, %s, %s' % (v(16 + 2 * rho + k), v(24 + 4 * rho + 2 * k), v(25 + 4 * rho + 2 * k)))
        if rho & 1:
            a('buffer_store_dwordx4 %s, v13, %s, s70 offen offset:%d' % (v(16 + 4 * (rho >> 1), 4), SRD_OUT, 16 * (rho >> 1)))
    stamp('out stores issued')


def epilogue():
    if OPT['stamps']:
        a('s_waitcnt vmcnt(0)')
        stamp('end')
        a('v_mov_b32 v2, 0')
        for k in range(nstamp[0]):
            a('v_writelane_b32 v2, s%d, %d' % (80 + k, k))
        a('s_lshl_b32 s64, s2, 2')
        a('s_add_u32 s64, s64, s3')
        a('s_lshl_b32 s64, s64, 8')
        a('s_add_u32 s64, s64, 0x%x' % WS_STAMP)
        a('v_lshlrev_b32 v3, 2, v1')
        a('buffer_store_dword v2, v3, %s, s64 offen' % SRD_WS)
    a.label('L_end')
    a('s_endpgm')


prologue()
p1_issue()
p1_stats()
p1_weights()
kgen_tables()
kgen_mfma()
kgen_expand()
sync_a()
dump_k()
conv()
gemm1()
gemm2()
epilogue()


def consistent(env):
    if env.get('exit'):
        return all(val == 0 for k, val in env.items() if k != 'exit')
    if env.get('w3') and env.get('w0'):
        return False
    if env.get('w3') and env.get('w2task'):
        return False
    return env.get('pollA', 1) == 1 and env.get('pollB', 1) == 1 and env.get('pollC', 1) == 1


a.consistent = consistent
nn = a.fix_hazards_fast()
ne = a.check_waits()
sys.stderr.write('nop states inserted: %d, wait errors: %d, %s\n' % (nn, ne, dict(a.stats())))

ref = open('cdna_kernels/%s.s.ref' % NAME).read()
head = ref.split('; @launch')[0]
out = head + '; @launch grid=(256,1,1) block=(256,1,1) lds=%d\n' % LDS_SIZE
out += '''.amdgcn_target "amdgcn-amd-amdhsa--gfx950"
.text
.globl {n}_kernel
.p2align 8
.type {n}_kernel,@function
{n}_kernel:
'''.format(n=NAME)
out += a.text()
out += '''.section .rodata,"a"
.p2align 6
.amdhsa_kernel {n}_kernel
  .amdhsa_next_free_vgpr 512
  .amdhsa_next_free_sgpr 102
  .amdhsa_accum_offset 256
  .amdhsa_group_segment_fixed_size 0
  .amdhsa_kernarg_size 104
  .amdhsa_user_sgpr_count 2
  .amdhsa_user_sgpr_kernarg_segment_ptr 1
  .amdhsa_system_sgpr_workgroup_id_x 1
.end_amdhsa_kernel
'''.format(n=NAME)
open(sys.argv[1], 'w').write(out)
```

```python
import sys
N="sequential_preLN__ssm_conv_s4d__dense_activation_silu__prompt_kernel"
src=open(sys.argv[1]).read()
kind=sys.argv[3]; amp=int(sys.argv[4]) if len(sys.argv)>4 else 3
alone=len(sys.argv)>5
b='''    s_cmp_ge_u32 s2, 256
    s_cbranch_scc1 P_end
    s_load_dwordx2 s[4:5], s[0:1], 0
    s_load_dwordx4 s[20:23], s[0:1], 64
    s_load_dwordx2 s[28:29], s[0:1], 96
    s_lshl_b32 s3, s2, 13
    v_lshl_add_u32 v1, v0, 4, s3
    v_add_u32 v2, 0x8001000, v1
    v_add_u32 v1, 0x1000, v1
    v_mul_u32_u24 v3, 5, v1
    v_lshrrev_b32 v3, 3, v3
    v_and_b32 v3, 0xfffffff0, v3
    v_mov_b32 v4, -1
    v_mov_b32 v5, -1
    v_mov_b32 v6, -1
    v_mov_b32 v7, -1
    v_lshrrev_b32 v30, 6, v0
    v_and_b32 v31, 63, v0
    v_readfirstlane_b32 s30, v30
    v_lshrrev_b32 v32, 3, v31
    v_and_b32 v33, 7, v31
    s_lshr_b32 s31, s2, 3
    s_lshl_b32 s31, s31, 2
    s_add_u32 s31, s31, s30
    s_lshr_b32 s32, s31, 5
    s_lshl_b32 s32, s32, 20
    s_and_b32 s33, s2, 7
    s_lshl_b32 s33, s33, 17
    s_add_u32 s32, s32, s33
    s_and_b32 s33, s31, 31
    s_lshl_b32 s33, s33, 7
    s_add_u32 s32, s32, s33
    s_add_u32 s32, s32, 0x9000000
    v_lshl_add_u32 v34, v33, 4, s32
    v_lshl_add_u32 v34, v32, 12, v34
    s_lshl_b32 s31, s2, 2
    s_add_u32 s31, s31, s30
    s_and_b32 s32, s31, 15
    s_mul_i32 s32, s32, 88064
    s_lshr_b32 s33, s31, 4
    s_mul_i32 s34, s33, 49
    s_lshr_b32 s34, s34, 10
    s_mul_i32 s34, s34, 21
    s_sub_u32 s33, s33, s34
    s_lshl_b32 s33, s33, 7
    s_add_u32 s32, s32, s33
    v_lshl_add_u32 v35, v33, 4, s32
    v_mul_u32_u24 v36, 2752, v32
    v_add_u32 v35, v35, v36
    s_lshr_b32 s31, s2, 3
    s_lshl_b32 s31, s31, 2
    s_add_u32 s31, s31, s30
    s_lshl_b32 s31, s31, 14
    s_and_b32 s33, s2, 7
    s_lshl_b32 s33, s33, 7
    s_add_u32 s31, s31, s33
    v_lshl_add_u32 v37, v33, 4, s31
    v_lshl_add_u32 v37, v32, 11, v37
    s_lshl_b32 s35, s30, 12
    s_mov_b32 m0, s35
    s_waitcnt lgkmcnt(0)
    s_mov_b32 s36, s20
    s_mov_b32 s37, s21
    s_mov_b32 s38, 1409024
    s_mov_b32 s39, 0x20000
    s_memrealtime s[8:9]
    s_waitcnt lgkmcnt(0)
'''
ops={'t':['global_load_dwordx4 v[60:63], v37, s[4:5]','global_load_dwordx4 v[64:67], v37, s[4:5] offset:1024'],
 'D':sum([['buffer_load_dwordx4 v35, s[36:39], 0 offen offset:%d lds'%(0),'v_add_u32 v35, 22016, v35'] for q in range(4)],[]),
 '0':['s_waitcnt vmcnt(0)'],'2':['s_waitcnt vmcnt(2)'],'4':['s_waitcnt vmcnt(4)'],'6':['s_waitcnt vmcnt(6)'],'8':['s_waitcnt vmcnt(8)'],
 'z':['s_memrealtime s[10:11]','s_waitcnt lgkmcnt(0)'],
'T':sum([['global_store_dwordx4 v34, v[4:7], s[28:29] sc1','v_add_u32 v34, 0x8000, v34'] for q in range(4)],[]),
 'V':sum([['global_load_dwordx4 v[%d:%d], v35, s[20:21]'%(40+4*q,43+4*q),'v_add_u32 v35, 22016, v35'] for q in range(4)],[]),
 'U':sum([['global_load_dwordx4 v[%d:%d], v35, s[20:21] nt'%(40+4*q,43+4*q),'v_add_u32 v35, 22016, v35'] for q in range(4)],[]),
'n':[],
 'x':['global_load_dwordx4 v[8:11], v1, s[4:5] offset:-4096','global_load_dwordx4 v[12:15], v1, s[4:5]'],
 's':['global_store_dwordx4 v2, v[4:7], s[28:29] offset:-4096 sc1','global_store_dwordx4 v2, v[4:7], s[28:29] sc1'],
 'p':['global_store_dwordx4 v2, v[4:7], s[28:29] offset:-4096','global_store_dwordx4 v2, v[4:7], s[28:29]'],
 'l':['global_load_dwordx4 v[8:11], v2, s[28:29] offset:-4096','global_load_dwordx4 v[12:15], v2, s[28:29]'],
 'w':['global_load_dwordx4 v[8:11], v3, s[20:21]','global_load_dwordx4 v[12:15], v3, s[22:23]'],
 'S':['global_store_dwordx4 v2, v[4:7], s[28:29] offset:-4096 sc0 sc1','global_store_dwordx4 v2, v[4:7], s[28:29] sc0 sc1'],
 'N':['global_store_dwordx4 v2, v[4:7], s[28:29] offset:-4096 sc1 nt','global_store_dwordx4 v2, v[4:7], s[28:29] sc1 nt'],
}
ops['c']=['s_movk_i32 s14, 64','P_loop:']+['v_add_u32 v20, 0x12345, v20']*32+['s_sub_u32 s14, s14, 1','s_cmp_lg_u32 s14, 0','s_cbranch_scc1 P_loop']
ops['i']=['.rept 2048','v_add_u32 v20, 0x12345, v20','.endr']
ops['f']=['s_getpc_b64 s[98:99]','s_lshr_b32 s69, s2, 3','s_lshl_b32 s69, s69, 10','v_and_b32 v21, 7, v0','v_lshl_add_u32 v21, v21, 7, s69','v_min_u32 v21, 0x4000, v21','global_load_dword v22, v21, s[98:99]']
ops['d']=['s_movk_i32 s14, 16','P_loop2:']+['v_add_u32 v20, 0x12345, v20']*32+['s_sub_u32 s14, s14, 1','s_cmp_lg_u32 s14, 0','s_cbranch_scc1 P_loop2']
ops['e']=['s_movk_i32 s14, 64','P_loop3:']+['v_add_u32 v20, v21, v20']*32+['s_sub_u32 s14, s14, 1','s_cmp_lg_u32 s14, 0','s_cbranch_scc1 P_loop3']
ops['Y']=ops['T']+['v_add_u32 v34, 0x3e0000, v34']
ops['y']=sum([['global_store_dwordx4 v2, v[4:7], s[28:29] offset:-4096 sc1','global_store_dwordx4 v2, v[4:7], s[28:29] sc1','v_add_u32 v2, 0x200000, v2'] for q in range(2)],[])
ops['q']=sum([['global_store_dwordx4 v2, v[4:7], s[28:29] offset:-4096','global_store_dwordx4 v2, v[4:7], s[28:29]','v_add_u32 v2, 0x200000, v2'] for q in range(2)],[])
ops['r']=sum([['global_load_dwordx4 v[8:11], v2, s[28:29] offset:-4096','global_load_dwordx4 v[12:15], v2, s[28:29]','v_add_u32 v2, 0x200000, v2'] for q in range(2)],[])
cyc=kind.startswith('@')
kind=kind.lstrip('@')
pre,meas=(kind.split('+')+[None])[:2] if '+' in kind else ('',kind)
for k in pre:
    for o in ops[k]: b+='    '+o+'\n'
    if k in 'spSNl': b+='    s_waitcnt vmcnt(0)\n    v_add_u32 v2, 0x%x, v2\n'%(0x200000)
if pre:
    b+='    s_waitcnt vmcnt(0)\n    s_memrealtime s[8:9]\n    s_waitcnt lgkmcnt(0)\n'
if cyc: b+='    s_memtime s[16:17]\n    s_waitcnt lgkmcnt(0)\n'
for k in meas:
    for o in ops[k]: b+='    '+o+'\n'
if 'z' not in meas: b+='    s_waitcnt vmcnt(0)\n    s_memrealtime s[10:11]\n    s_waitcnt lgkmcnt(0)\n'
b+='''    s_waitcnt vmcnt(0)
    s_sub_u32 s12, s10, s8
    s_lshl_b32 s12, s12, %d
'''%amp
if cyc: b+='    s_memtime s[18:19]\n    s_waitcnt lgkmcnt(0)\n    s_sub_u32 s12, s18, s16\n    s_lshr_b32 s12, s12, 2\n'
b+='    s_min_u32 s12, s12, 20000\n'
if alone:
    b+='''    s_lshr_b32 s12, s12, %d
    v_mov_b32 v8, s12
    v_lshrrev_b32 v9, 6, v0
    s_lshl_b32 s3, s2, 4
    v_lshl_add_u32 v9, v9, 2, s3
    global_store_dword v9, v8, s[28:29]
    s_waitcnt vmcnt(0)
'''%amp
else:
    b+='''P_hold:
    s_memrealtime s[10:11]
    s_waitcnt lgkmcnt(0)
    s_sub_u32 s13, s10, s8
    s_cmp_lt_u32 s13, s12
    s_cbranch_scc1 P_hold
'''
b+='P_end:\n    s_endpgm\n'
desc='''.amdhsa_kernel %s
  .amdhsa_next_free_vgpr 512
  .amdhsa_next_free_sgpr 102
  .amdhsa_accum_offset 256
  .amdhsa_group_segment_fixed_size 0
  .amdhsa_kernarg_size 104
  .amdhsa_user_sgpr_count 2
  .amdhsa_user_sgpr_kernarg_segment_ptr 1
  .amdhsa_system_sgpr_workgroup_id_x 1
.end_amdhsa_kernel
'''
if alone:
    out='; @launch grid=(256,1,1) block=(256,1,1) lds=161280\n.amdgcn_target "amdgcn-amd-amdhsa--gfx950"\n.text\n.globl %s\n.p2align 8\n.type %s,@function\n%s:\n'%(N,N,N)+b+'.section .rodata,"a"\n.p2align 6\n'+desc%N
else:
    ln=[l for l in src.split('\n') if l.startswith('; @launch')][0]
    out=src.replace(ln,'; @launch kernel=probe_kernel grid=(256,1,1) block=(256,1,1) lds=161280\n; @launch kernel=%s grid=(256,1,1) block=(256,1,1) lds=161280'%N)
    out=out.replace('.section .rodata,"a"','.globl probe_kernel\n.p2align 8\n.type probe_kernel,@function\nprobe_kernel:\n'+b+'.section .rodata,"a"')
    out+='.p2align 6\n'+desc%'probe_kernel'
open(sys.argv[2],'w').write(out)
```

```python
import sys
N="sequential_preLN__ssm_conv_s4d__dense_activation_silu__prompt_kernel"
src=open(sys.argv[1]).read()
kind=sys.argv[3]; amp=int(sys.argv[4]) if len(sys.argv)>4 else 3
alone=len(sys.argv)>5
b='''    s_cmp_ge_u32 s2, 256
    s_cbranch_scc1 P_end
    s_load_dwordx2 s[4:5], s[0:1], 0
    s_load_dwordx4 s[20:23], s[0:1], 64
    s_load_dwordx2 s[28:29], s[0:1], 96
    s_lshl_b32 s3, s2, 13
    v_lshl_add_u32 v1, v0, 4, s3
    v_add_u32 v2, BASEADDR, v1
    v_add_u32 v1, 0x1000, v1
    v_mul_u32_u24 v3, 5, v1
    v_lshrrev_b32 v3, 3, v3
    v_and_b32 v3, 0xfffffff0, v3
    v_mov_b32 v4, -1
    v_mov_b32 v5, -1
    v_mov_b32 v6, -1
    v_mov_b32 v7, -1
    v_lshrrev_b32 v30, 6, v0
    v_and_b32 v31, 63, v0
    v_readfirstlane_b32 s30, v30
    v_lshrrev_b32 v32, 3, v31
    v_and_b32 v33, 7, v31
    s_lshr_b32 s31, s2, 3
    s_lshl_b32 s31, s31, 2
    s_add_u32 s31, s31, s30
    s_lshr_b32 s32, s31, 5
    s_lshl_b32 s32, s32, 20
    s_and_b32 s33, s2, 7
    s_lshl_b32 s33, s33, 17
    s_add_u32 s32, s32, s33
    s_and_b32 s33, s31, 31
    s_lshl_b32 s33, s33, 7
    s_add_u32 s32, s32, s33
    s_add_u32 s32, s32, 0x9000000
    v_lshl_add_u32 v34, v33, 4, s32
    v_lshl_add_u32 v34, v32, 12, v34
    s_lshl_b32 s31, s2, 2
    s_add_u32 s31, s31, s30
    s_and_b32 s32, s31, 15
    s_mul_i32 s32, s32, 88064
    s_lshr_b32 s33, s31, 4
    s_mul_i32 s34, s33, 49
    s_lshr_b32 s34, s34, 10
    s_mul_i32 s34, s34, 21
    s_sub_u32 s33, s33, s34
    s_lshl_b32 s33, s33, 7
    s_add_u32 s32, s32, s33
    v_lshl_add_u32 v35, v33, 4, s32
    v_mul_u32_u24 v36, 2752, v32
    v_add_u32 v35, v35, v36
    s_lshr_b32 s31, s2, 3
    s_lshl_b32 s31, s31, 2
    s_add_u32 s31, s31, s30
    s_lshl_b32 s31, s31, 14
    s_and_b32 s33, s2, 7
    s_lshl_b32 s33, s33, 7
    s_add_u32 s31, s31, s33
    v_lshl_add_u32 v37, v33, 4, s31
    v_lshl_add_u32 v37, v32, 11, v37
    s_lshl_b32 s35, s30, 12
    s_mov_b32 m0, s35
    s_waitcnt lgkmcnt(0)
    s_mov_b32 s36, s20
    s_mov_b32 s37, s21
    s_mov_b32 s38, 1409024
    s_mov_b32 s39, 0x20000
    s_memrealtime s[8:9]
    s_waitcnt lgkmcnt(0)
'''
ops={'t':['global_load_dwordx4 v[60:63], v37, s[4:5]','global_load_dwordx4 v[64:67], v37, s[4:5] offset:1024'],
 'D':sum([['buffer_load_dwordx4 v35, s[36:39], 0 offen offset:%d lds'%(0),'v_add_u32 v35, 22016, v35'] for q in range(4)],[]),
 '0':['s_waitcnt vmcnt(0)'],'2':['s_waitcnt vmcnt(2)'],'4':['s_waitcnt vmcnt(4)'],'6':['s_waitcnt vmcnt(6)'],'8':['s_waitcnt vmcnt(8)'],
 'z':['s_memrealtime s[10:11]','s_waitcnt lgkmcnt(0)'],
'T':sum([['global_store_dwordx4 v34, v[4:7], s[28:29] sc1','v_add_u32 v34, 0x8000, v34'] for q in range(4)],[]),
 'V':sum([['global_load_dwordx4 v[%d:%d], v35, s[20:21]'%(40+4*q,43+4*q),'v_add_u32 v35, 22016, v35'] for q in range(4)],[]),
 'U':sum([['global_load_dwordx4 v[%d:%d], v35, s[20:21] nt'%(40+4*q,43+4*q),'v_add_u32 v35, 22016, v35'] for q in range(4)],[]),
'n':[],
 'x':['global_load_dwordx4 v[8:11], v1, s[4:5] offset:-4096','global_load_dwordx4 v[12:15], v1, s[4:5]'],
 's':['global_store_dwordx4 v2, v[4:7], s[28:29] offset:-4096 sc1','global_store_dwordx4 v2, v[4:7], s[28:29] sc1'],
 'p':['global_store_dwordx4 v2, v[4:7], s[28:29] offset:-4096','global_store_dwordx4 v2, v[4:7], s[28:29]'],
 'l':['global_load_dwordx4 v[8:11], v2, s[28:29] offset:-4096','global_load_dwordx4 v[12:15], v2, s[28:29]'],
 'w':['global_load_dwordx4 v[8:11], v3, s[20:21]','global_load_dwordx4 v[12:15], v3, s[22:23]'],
 'S':['global_store_dwordx4 v2, v[4:7], s[28:29] offset:-4096 sc0 sc1','global_store_dwordx4 v2, v[4:7], s[28:29] sc0 sc1'],
 'N':['global_store_dwordx4 v2, v[4:7], s[28:29] offset:-4096 sc1 nt','global_store_dwordx4 v2, v[4:7], s[28:29] sc1 nt'],
}
ops['c']=['s_movk_i32 s14, 64','P_loop:']+['v_add_u32 v20, 0x12345, v20']*32+['s_sub_u32 s14, s14, 1','s_cmp_lg_u32 s14, 0','s_cbranch_scc1 P_loop']
ops['i']=['.rept 2048','v_add_u32 v20, 0x12345, v20','.endr']
ops['f']=['s_getpc_b64 s[98:99]','s_lshr_b32 s69, s2, 3','s_lshl_b32 s69, s69, 10','v_and_b32 v21, 7, v0','v_lshl_add_u32 v21, v21, 7, s69','v_min_u32 v21, 0x4000, v21','global_load_dword v22, v21, s[98:99]']
ops['d']=['s_movk_i32 s14, 16','P_loop2:']+['v_add_u32 v20, 0x12345, v20']*32+['s_sub_u32 s14, s14, 1','s_cmp_lg_u32 s14, 0','s_cbranch_scc1 P_loop2']
ops['e']=['s_movk_i32 s14, 64','P_loop3:']+['v_add_u32 v20, v21, v20']*32+['s_sub_u32 s14, s14, 1','s_cmp_lg_u32 s14, 0','s_cbranch_scc1 P_loop3']
ops['Y']=ops['T']+['v_add_u32 v34, 0x3e0000, v34']
ops['y']=sum([['global_store_dwordx4 v2, v[4:7], s[28:29] offset:-4096 sc1','global_store_dwordx4 v2, v[4:7], s[28:29] sc1','v_add_u32 v2, 0x200000, v2'] for q in range(2)],[])
ops['q']=sum([['global_store_dwordx4 v2, v[4:7], s[28:29] offset:-4096','global_store_dwordx4 v2, v[4:7], s[28:29]','v_add_u32 v2, 0x200000, v2'] for q in range(2)],[])
ops['r']=sum([['global_load_dwordx4 v[8:11], v2, s[28:29] offset:-4096','global_load_dwordx4 v[12:15], v2, s[28:29]','v_add_u32 v2, 0x200000, v2'] for q in range(2)],[])
ops['g']=['s_and_b32 s40, s2, 7','s_lshl_b32 s40, s40, 5','s_lshr_b32 s41, s2, 3','s_add_u32 s40, s40, s41','s_lshl_b32 s40, s40, 6','s_lshl_b32 s41, s30, 4','s_add_u32 s40, s40, s41','s_add_u32 s40, s40, 0xa000000','v_mov_b32 v50, s40','s_mov_b64 exec, 1','global_store_dwordx4 v50, v[4:7], s[28:29] sc1','s_mov_b64 exec, -1']
ops['G']=['s_lshl_b32 s40, s2, 2','s_add_u32 s40, s40, s30','s_lshl_b32 s40, s40, 5','s_add_u32 s40, s40, 0xa100000','v_mov_b32 v50, s40','s_mov_b64 exec, 1','global_store_dword v50, v4, s[28:29] sc1','s_mov_b64 exec, -1']
ops['k']=['s_load_dword s42, s[28:29], 0','s_waitcnt lgkmcnt(0)']
post=''
if '/' in kind: kind,post=kind.split('/')
def rdall(shift,pol=''):
    o=['s_add_u32 s40, s2, %d'%shift,'s_and_b32 s40, s40, 255','s_lshl_b32 s40, s40, 13','v_lshl_add_u32 v52, v0, 4, s40','v_add_u32 v52, BASEADDR, v52']
    for q in range(4): o+=['global_load_dwordx4 v[8:11], v52, s[28:29] offset:-4096'+pol,'global_load_dwordx4 v[12:15], v52, s[28:29]'+pol,'v_add_u32 v52, 0x200000, v52']
    return o+['s_waitcnt vmcnt(0)']
ops['A']=rdall(0); ops['B']=rdall(1); ops['C']=rdall(8); ops['I']=['buffer_inv sc1','s_waitcnt vmcnt(0)']
ops['W']=['s_waitcnt vmcnt(0)','buffer_wbl2 sc1','s_waitcnt vmcnt(0)']
ops['X']=['s_waitcnt vmcnt(0)','s_barrier','s_cmp_lg_u32 s30, 0','s_cbranch_scc1 P_nowb','buffer_wbl2 sc1','s_waitcnt vmcnt(0)','P_nowb:']
cyc=kind.startswith('@')
kind=kind.lstrip('@')
pre,meas=(kind.split('+')+[None])[:2] if '+' in kind else ('',kind)
for k in pre:
    for o in ops[k]: b+='    '+o+'\n'
    if k in 'spSNl': b+='    s_waitcnt vmcnt(0)\n    v_add_u32 v2, 0x%x, v2\n'%(0x200000)
if pre:
    b+='    s_waitcnt vmcnt(0)\n    s_memrealtime s[8:9]\n    s_waitcnt lgkmcnt(0)\n'
if cyc: b+='    s_memtime s[16:17]\n    s_waitcnt lgkmcnt(0)\n'
for k in meas:
    for o in ops[k]: b+='    '+o+'\n'
if 'z' not in meas: b+='    s_waitcnt vmcnt(0)\n    s_memrealtime s[10:11]\n    s_waitcnt lgkmcnt(0)\n'
b+='''    s_waitcnt vmcnt(0)
    s_sub_u32 s12, s10, s8
    s_lshl_b32 s12, s12, %d
'''%amp
if cyc: b+='    s_memtime s[18:19]\n    s_waitcnt lgkmcnt(0)\n    s_sub_u32 s12, s18, s16\n    s_lshr_b32 s12, s12, 2\n'
b+='    s_min_u32 s12, s12, 20000\n'
for k in post:
    for o in ops[k]: b+='    '+o+'\n'
if alone:
    b+='''    s_lshr_b32 s12, s12, %d
    v_mov_b32 v8, s12
    v_lshrrev_b32 v9, 6, v0
    s_lshl_b32 s3, s2, 4
    v_lshl_add_u32 v9, v9, 2, s3
    global_store_dword v9, v8, s[28:29]
    s_waitcnt vmcnt(0)
'''%amp
else:
    b+='''P_hold:
    s_memrealtime s[10:11]
    s_waitcnt lgkmcnt(0)
    s_sub_u32 s13, s10, s8
    s_cmp_lt_u32 s13, s12
    s_cbranch_scc1 P_hold
'''
b+='P_end:\n    s_endpgm\n'
import os
b=b.replace('BASEADDR',hex(int(os.environ.get('BASE','0x8000000'),0)+0x1000))
desc='''.amdhsa_kernel %s
  .amdhsa_next_free_vgpr 512
  .amdhsa_next_free_sgpr 102
  .amdhsa_accum_offset 256
  .amdhsa_group_segment_fixed_size 0
  .amdhsa_kernarg_size 104
  .amdhsa_user_sgpr_count 2
  .amdhsa_user_sgpr_kernarg_segment_ptr 1
  .amdhsa_system_sgpr_workgroup_id_x 1
.end_amdhsa_kernel
'''
if alone:
    out='; @launch grid=(256,1,1) block=(256,1,1) lds=161280\n.amdgcn_target "amdgcn-amd-amdhsa--gfx950"\n.text\n.globl %s\n.p2align 8\n.type %s,@function\n%s:\n'%(N,N,N)+b+'.section .rodata,"a"\n.p2align 6\n'+desc%N
else:
    ln=[l for l in src.split('\n') if l.startswith('; @launch')][0]
    out=src.replace(ln,'; @launch kernel=probe_kernel grid=(256,1,1) block=(256,1,1) lds=161280\n; @launch kernel=%s grid=(256,1,1) block=(256,1,1) lds=161280'%N)
    out=out.replace('.section .rodata,"a"','.globl probe_kernel\n.p2align 8\n.type probe_kernel,@function\nprobe_kernel:\n'+b+'.section .rodata,"a"')
    out+='.p2align 6\n'+desc%'probe_kernel'
open(sys.argv[2],'w').write(out)
```
